```python
import torch

def _softmax(x, axis=-1):
    return torch.softmax(x, dim=axis)
def _gelu(x):
    return torch.nn.functional.gelu(x, approximate="tanh")
def _silu(x):
    return torch.nn.functional.silu(x)
def _sigmoid(x):
    return torch.sigmoid(x)
def _layernorm(x, axis=-1, eps=1e-5):
    m = x.mean(dim=axis, keepdim=True)
    v = x.var(dim=axis, keepdim=True, unbiased=False)
    return (x - m) / torch.sqrt(v + eps)
def _scatter_add(tgt, idx, src, axis=0):
    return tgt.clone().index_add_(axis, idx, src)
def _segment_sum(src, seg, n):
    out = torch.zeros((n,) + src.shape[1:], dtype=src.dtype)
    return out.index_add_(0, seg, src)
def _pad(x, pw):
    flat = tuple(v for pair in reversed(pw) for v in pair)
    return torch.nn.functional.pad(x, flat)

kernel_name = 'sequential_preLN__linear_attn_block__dense_activation_silu__prompt'

def setup_inputs():

    _w = (lambda a: (lambda t: t.to(torch.bfloat16) if t.is_floating_point() else t)(torch.as_tensor(a)))
    def _A_setup():
        B, S, D = 1, 2048, 512
        return {
            "x": _w((lambda *s: torch.randn(*s, dtype=torch.bfloat16) * 0.05)(B, S, D)),
            "wqkv": _w((lambda *s: torch.randn(*s, dtype=torch.bfloat16) * 0.05)(D, 3 * D)),
            "wo": _w((lambda *s: torch.randn(*s, dtype=torch.bfloat16) * 0.05)(D, D)),
        }
    _A_in = _A_setup()

    def _B_setup():
        B, S, D, F = 1, 2048, 512, 1792
        return {
            "x": _w((lambda *s: torch.randn(*s, dtype=torch.bfloat16) * 0.05)(B, S, D)),
            "w1": _w((lambda *s: torch.randn(*s, dtype=torch.bfloat16) * 0.8)(D, F) * (D ** -0.5)),
            "w2": _w((lambda *s: torch.randn(*s, dtype=torch.bfloat16) * 0.1)(F, D) * (F ** -0.5)),
        }
    _B_in = _B_setup()

    return {
        "A_x": _A_in["x"],
        "A_wqkv": _A_in["wqkv"],
        "A_wo": _A_in["wo"],
        "B_x": _B_in["x"],
        "B_w1": _B_in["w1"],
        "B_w2": _B_in["w2"],
    }

def reference(A_x, A_wqkv, A_wo, B_x, B_w1, B_w2):
    def _A_ref(x, wqkv, wo):
        B, S, D = x.shape
        H = 32; Dh = D // H
        qkv = (lambda x, *d: x.permute(*d))((x @ wqkv).reshape(B, S, 3, H, Dh), 2, 0, 3, 1, 4)
        q, k, v = qkv[0], qkv[1], qkv[2]
        phi = lambda t: torch.where(t > 0, t + 1, torch.exp(t)) + 1e-6
        pq, pk = phi(q), phi(k)
        kv = torch.einsum("bhsd,bhse->bhde", pk, v)
        z = torch.einsum("bhsd->bhd", pk)
        num = torch.einsum("bhqd,bhde->bhqe", pq, kv)
        den = torch.einsum("bhqd,bhd->bhq", pq, z)[..., None] + 1e-6
        o = num / den
        return (lambda x, *d: x.permute(*d))(o, 0, 2, 1, 3).reshape(B, S, D) @ wo

    def _B_ref(x, w1, w2):
        h = torch.einsum("bsd,df->bsf", x, w1)
        h = _silu(h)
        out = torch.einsum("bsf,fd->bsd", h, w2)
        return out

    x = A_x
    h = x + _A_ref(_layernorm(x, axis=-1), A_wqkv, A_wo)
    h2 = h + _B_ref(_layernorm(h, axis=-1), B_w1, B_w2)
    return h2
```

```python
WS_PQ   = 0x000000
WS_KV   = 0x200000
WS_H    = 0x400000
WS_STAT = 0x600000
WS_H1   = 0x800000
WS_BYTES = 268435456

class G:
    def __init__(self):
        self.L = []
    def __call__(self, s):
        for line in s.strip("\n").split("\n"):
            line = line.strip()
            if line:
                self.L.append("  " + line)
    def label(self, s):
        self.L.append(s + ":")
    def raw(self, s):
        self.L.append(s)
    def text(self):
        return "\n".join(self.L) + "\n"

def vr(base, n=1):
    return f"v{base}" if n == 1 else f"v[{base}:{base+n-1}]"
def ar(base, n=1):
    return f"a{base}" if n == 1 else f"a[{base}:{base+n-1}]"
def sr(base, n=1):
    return f"s{base}" if n == 1 else f"s[{base}:{base+n-1}]"

def kernel_header(g, name):
    g.raw(f".globl {name}")
    g.raw(".p2align 8")
    g.raw(f".type {name},@function")
    g.label(name)

def kernel_desc(name, vgpr, sgpr, accum):
    return f"""
.amdhsa_kernel {name}
  .amdhsa_next_free_vgpr {vgpr}
  .amdhsa_next_free_sgpr {sgpr}
  .amdhsa_accum_offset {accum}
  .amdhsa_group_segment_fixed_size 0
  .amdhsa_kernarg_size 72
  .amdhsa_user_sgpr_count 2
  .amdhsa_user_sgpr_kernarg_segment_ptr 1
  .amdhsa_system_sgpr_workgroup_id_x 1
.end_amdhsa_kernel
"""

def srd(g, s, base_lo, base_hi, nbytes):
    g(f"s_mov_b32 s{s}, {base_lo}")
    g(f"s_mov_b32 s{s+1}, {base_hi}")
    if nbytes is not None:
        g(f"s_mov_b32 s{s+2}, {nbytes}")
    g(f"s_mov_b32 s{s+3}, 0x00020000")

def round_bf16(g, v):
    g(f"v_cvt_pk_bf16_f32 v{v}, v{v}, v{v}")
    g(f"v_lshlrev_b32 v{v}, 16, v{v}")

def reduce_g(g, v, t):
    g(f"v_mov_b32 v{t}, v{v}")
    g("s_nop 1")
    g(f"v_permlane16_swap_b32 v{v}, v{t}")
    g(f"v_add_f32 v{v}, v{v}, v{t}")
    g(f"v_mov_b32 v{t}, v{v}")
    g("s_nop 1")
    g(f"v_permlane32_swap_b32 v{v}, v{t}")
    g(f"v_add_f32 v{v}, v{v}, v{t}")

def ln_stats(g, vsum, vsq, vm, vr_, t):
    g(f"v_mul_f32 v{vm}, 0x3b000000, v{vsum}")
    g(f"v_mul_f32 v{t}, 0x3b000000, v{vsq}")
    g(f"v_fma_f32 v{t}, -v{vm}, v{vm}, v{t}")
    g(f"v_max_f32 v{t}, 0, v{t}")
    round_bf16(g, vm)
    round_bf16(g, t)
    g(f"v_add_f32 v{t}, 0x3727c5ac, v{t}")
    round_bf16(g, t)
    g(f"v_sqrt_f32 v{t}, v{t}")
    g("s_nop 0")
    round_bf16(g, t)
    g(f"v_rcp_f32 v{vr_}, v{t}")
    g("s_nop 0")

def phi(g, t, u):
    g(f"v_min_f32 v{u}, 0, v{t}")
    g(f"v_mul_f32 v{u}, 0x3fb8aa3b, v{u}")
    g(f"v_exp_f32 v{u}, v{u}")
    g(f"v_max_f32 v{t}, 0, v{t}")
    g(f"v_add_f32 v{t}, 0x358637bd, v{t}")
    g(f"v_add_f32 v{t}, v{t}, v{u}")


import os
STAMPS = bool(os.environ.get("STAMPS"))
WS_DBG = 0x2000000
_stamp_n = [0]
def stamp_reset(): _stamp_n[0] = 0
def stamp(g):
    if not STAMPS: return
    i = _stamp_n[0]; _stamp_n[0] += 1
    g(f"s_memtime s[60:61]")
    g("s_waitcnt lgkmcnt(0)")
    g(f"s_mov_b32 s{64+i}, s60")
def stamp_real(g, idx):
    if not STAMPS: return
    g(f"s_memrealtime s[60:61]")
    g("s_waitcnt lgkmcnt(0)")
    g(f"s_mov_b32 s{96+idx}, s60")
def stamp_flush(g, kidx, sW, sWS):
    if not STAMPS: return
    n = _stamp_n[0]
    g("v_mov_b32 v250, 0")
    for i in range(n):
        g(f"v_writelane_b32 v250, s{64+i}, {i}")
    g(f"v_writelane_b32 v250, s96, 30")
    g(f"v_writelane_b32 v250, s97, 31")
    g(f"s_lshl_b32 s60, s2, 2")
    g(f"s_add_u32 s60, s60, s{sW}")
    g(f"s_lshl_b32 s60, s60, 7")
    g(f"s_add_u32 s60, s60, {WS_DBG + kidx*131072}")
    g("v_and_b32 v251, 63, v0")
    g("v_lshlrev_b32 v251, 2, v251")
    g("s_mov_b64 exec, 0xffffffff")
    g(f"buffer_store_dword v250, v251, s[{sWS}:{sWS+3}], s60 offen")
    g("s_mov_b64 exec, -1")
```

```python
from common import *

def gen_k1(g, name="k1_kernel"):
    vLane, vA0, vA1, vW = 1, 2, 3, 4
    vB = 5
    vS = 9
    vT = 13
    ACC = 16
    BF = 64
    AF = 112
    XT = 240
    sI, sJ, sW = 3, 4, 5
    sX, sWt, sWS, sDBG, sKV = 8, 12, 16, 20, 24
    sONES, sZ = 30, 31
    sT0, sT1, sM0b, sSob = 32, 33, 34, 35
    CSOFF = 98304
    def acc(mtl, nt): return ACC + (mtl*6 + nt)*4
    def bf(buf, nt): return BF + (buf*6 + nt)*4
    def af(mtl, ks): return AF + (mtl*16 + ks)*4

    kernel_header(g, name)
    stamp_reset(); stamp(g); stamp_real(g, 0)
    g(f"""
    s_cmp_ge_u32 s2, 256
    s_cbranch_scc1 {name}_end
    s_load_dwordx2 s[36:37], s[0:1], 0
    s_load_dwordx2 s[38:39], s[0:1], 8
    s_load_dwordx2 s[40:41], s[0:1], 56
    s_load_dwordx2 s[42:43], s[0:1], 64
    s_and_b32 s{sJ}, s2, 15
    s_lshr_b32 s{sI}, s2, 4
    v_and_b32 v{vLane}, 63, v0
    v_lshrrev_b32 v{vT}, 6, v0
    s_mov_b32 s{sONES}, 0x3f803f80
    v_readfirstlane_b32 s{sW}, v{vT}
    s_waitcnt lgkmcnt(0)
    """)
    stamp(g)
    g(f"s_lshl_b32 s6, s{sI}, 17")
    g(f"s_add_u32 s{sX}, s36, s6")
    g(f"s_addc_u32 s{sX+1}, s37, 0")
    g(f"s_mov_b32 s{sX+2}, 131072")
    g(f"s_mov_b32 s{sX+3}, 0x00020000")
    g(f"s_lshl_b32 s6, s{sJ}, 6")
    g(f"s_add_u32 s{sWt}, s38, s6")
    g(f"s_addc_u32 s{sWt+1}, s39, 0")
    g(f"s_sub_u32 s{sWt+2}, 1572864, s6")
    g(f"s_mov_b32 s{sWt+3}, 0x00020000")
    srd(g, sWS, "s42", "s43", WS_BYTES)
    srd(g, sDBG, "s40", "s41", 256)
    g(f"s_mul_i32 s6, s{sJ}, 2176")
    g(f"s_add_u32 s6, s6, {WS_KV}")
    g(f"s_add_u32 s{sKV}, s42, s6")
    g(f"s_addc_u32 s{sKV+1}, s43, 0")
    g(f"s_mov_b32 s{sKV+2}, 2176")
    g(f"s_mov_b32 s{sKV+3}, 0x00020000")
    g(f"""
    v_lshrrev_b32 v14, 4, v{vLane}
    v_and_b32 v15, 15, v{vLane}
    """)
    g(f"s_lshl_b32 s6, s{sW}, 15")
    g(f"v_lshlrev_b32 v{vA0}, 10, v15")
    g(f"v_lshl_add_u32 v{vA0}, v14, 4, v{vA0}")
    g(f"v_add_u32 v{vA0}, s6, v{vA0}")
    g(f"v_add_u32 v{vA1}, 16384, v{vA0}")
    g(f"""
    v_lshrrev_b32 v{vT}, 2, v{vLane}
    v_mul_u32_u24 v{vW}, 3072, v{vT}
    v_lshrrev_b32 v{vT}, 5, v{vLane}
    v_lshlrev_b32 v{vT}, 1, v{vT}
    v_and_b32 v{vT+1}, 3, v{vLane}
    v_xor_b32 v{vT}, v{vT}, v{vT+1}
    v_lshl_add_u32 v{vW}, v{vT}, 4, v{vW}
    """)
    g(f"""
    v_lshrrev_b32 v14, 4, v{vLane}
    v_and_b32 v15, 15, v{vLane}
    """)
    g(f"""
    v_lshlrev_b32 v{vB}, 9, v14
    v_bfe_u32 v{vT}, v{vLane}, 2, 2
    v_lshl_add_u32 v{vB}, v{vT}, 6, v{vB}
    v_and_b32 v{vT}, 3, v{vLane}
    v_lshl_add_u32 v{vB}, v{vT}, 3, v{vB}
    v_and_b32 v{vT}, 1, v14
    v_lshlrev_b32 v{vT}, 5, v{vT}
    v_add_u32 v{vB+1}, v{vB}, v{vT}
    v_add_u32 v{vB}, v{vB}, v{vT}
    """)
    g(f"""
    v_sub_u32 v{vB+1}, v{vB+1}, v{vT}
    v_sub_u32 v{vB+1}, v{vB+1}, v{vT}
    v_add_u32 v{vB+1}, 32, v{vB+1}
    v_add_u32 v{vB+2}, 0x10000, v{vB}
    v_add_u32 v{vB+3}, 0x10000, v{vB+1}
    """)
    for q in range(4):
        g(f"v_mov_b32 v{vS+q}, 0")
    g(f"v_mov_b32 v{vT}, s{sONES}")
    for q in range(4):
        g(f"v_accvgpr_write_b32 a{24+q}, v{vT}")
    g(f"""
    s_mov_b32 s{sZ}, 0
    s_or_b32 s6, s{sI}, s{sW}
    s_cmp_lg_u32 s6, 0
    s_cbranch_scc1 {name}_nozero
    s_mov_b32 s{sZ}, 1
    v_lshlrev_b32 v{vT}, 2, v{vLane}
    """)
    for q in range(9):
        g(f"v_mov_b32 v{XT+q}, 0")
    for q in range(9):
        g(f"buffer_atomic_swap v{XT+q}, v{vT}, s[{sKV}:{sKV+3}], 0 offen offset:{q*256} sc0")
    g.label(f"{name}_nozero")
    g(f"s_lshl_b32 s{sM0b}, s{sW}, 10")
    g(f"s_mul_i32 s{sSob}, s{sW}, 49152")
    stamp(g)
    for f in range(4):
        if f: stamp(g)
        for t in (2*f, 2*f+1):
            for seg in range(3):
                g(f"s_add_u32 m0, s{sM0b}, {seg*32768 + 4*t*1024}")
                g(f"s_add_u32 s{sT0}, s{sSob}, {4*t*49152 + seg*1024}")
                g(f"buffer_load_dwordx4 v{vW}, s[{sWt}:{sWt+3}], s{sT0} offen lds")
        for ks in range(4*f, 4*f+4):
            g(f"buffer_load_dwordx4 {vr(af(0,ks),4)}, v{vA0}, s[{sX}:{sX+3}], 0 offen offset:{ks*64}")
            g(f"buffer_load_dwordx4 {vr(af(1,ks),4)}, v{vA1}, s[{sX}:{sX+3}], 0 offen offset:{ks*64}")

    stamp(g)
    def breads(ks, buf):
        for nt in range(6):
            seg, half = nt >> 1, nt & 1
            base = vB + half + (2 if seg == 2 else 0)
            off = (seg & 1) * 32768 + ks * 2048
            g(f"ds_read_b64_tr_b16 {vr(bf(buf,nt),2)}, v{base} offset:{off}")
            g(f"ds_read_b64_tr_b16 {vr(bf(buf,nt)+2,2)}, v{base} offset:{off+256}")

    for f in range(4):
        g(f"s_waitcnt vmcnt({56 - 14*(f+1)})")
        if f == 0:
            g(f"s_cmp_lg_u32 s{sZ}, 1")
            g(f"s_cbranch_scc1 {name}_noflag")
            g(f"s_mov_b64 exec, 1")
            g(f"v_mov_b32 v{vT}, s{sJ}")
            g(f"v_lshlrev_b32 v{vT}, 2, v{vT}")
            g(f"v_mov_b32 v{vT+1}, 1")
            g(f"buffer_store_dword v{vT+1}, v{vT}, s[{sDBG}:{sDBG+3}], 0 offen sc0 sc1")
            g(f"s_mov_b64 exec, -1")
            g.label(f"{name}_noflag")
        g("s_barrier")
        stamp(g)
        breads(4*f, 0)
        for ks in range(4*f, 4*f+4):
            buf = (ks - 4*f) & 1
            if ks < 4*f+3:
                breads(ks+1, buf ^ 1)
                g("s_waitcnt lgkmcnt(12)")
            else:
                g("s_waitcnt lgkmcnt(0)")
            for mtl in range(2):
                for nt in range(6):
                    c = "0" if ks == 0 else vr(acc(mtl,nt),4)
                    if nt < 2:
                        g(f"v_mfma_f32_16x16x32_bf16 {vr(acc(mtl,nt),4)}, {vr(bf(buf,nt),4)}, {vr(af(mtl,ks),4)}, {c}")
                    else:
                        g(f"v_mfma_f32_16x16x32_bf16 {vr(acc(mtl,nt),4)}, {vr(af(mtl,ks),4)}, {vr(bf(buf,nt),4)}, {c}")
            g(f"s_cmp_lg_u32 s{sW}, {f}")
            g(f"s_cbranch_scc1 {name}_nocs{ks}")
            for nt in range(6):
                c = "0" if ks == 4*f else ar(nt*4,4)
                g(f"v_mfma_f32_16x16x32_bf16 {ar(nt*4,4)}, a[24:27], {vr(bf(buf,nt),4)}, {c}")
            g.label(f"{name}_nocs{ks}")
            for mtl in range(2):
                for q in range(4):
                    a = af(mtl,ks)+q
                    g(f"v_dot2_f32_bf16 v{vS+2*mtl}, v{a}, s{sONES}, v{vS+2*mtl}")
                    g(f"v_dot2_f32_bf16 v{vS+2*mtl+1}, v{a}, v{a}, v{vS+2*mtl+1}")
    return dict(vLane=vLane, vS=vS, vT=vT, ACC=ACC, acc=acc, AF=AF, sI=sI, sJ=sJ, sW=sW, sWS=sWS, sDBG=sDBG, sKV=sKV,
                sONES=sONES, CSOFF=CSOFF, name=name, XT=XT)

def gen_k1_epilogue(g, R):
    name = R["name"]; vLane = R["vLane"]; vS = R["vS"]; acc = R["acc"]; AF = R["AF"]
    sI, sJ, sW, sWS, sDBG, sKV, sONES, CSOFF = R["sI"], R["sJ"], R["sW"], R["sWS"], R["sDBG"], R["sKV"], R["sONES"], R["CSOFF"]
    T = AF
    stamp(g)
    vG, vL15 = T, T+1
    g(f"v_lshrrev_b32 v{vG}, 4, v{vLane}")
    g(f"v_and_b32 v{vL15}, 15, v{vLane}")
    vFlag = T+2
    g(f"v_mov_b32 v{T+3}, s{sJ}")
    g(f"v_lshlrev_b32 v{T+3}, 2, v{T+3}")
    g(f"buffer_load_dword v{vFlag}, v{T+3}, s[{sDBG}:{sDBG+3}], 0 offen sc0 sc1")
    for q in range(4):
        reduce_g(g, vS+q, 13)
    mA = [T+4, T+6]; rA = [T+5, T+7]
    for mtl in range(2):
        ln_stats(g, vS+2*mtl, vS+2*mtl+1, mA[mtl], rA[mtl], 13)
    vIdx = T+8
    for r in range(4):
        g(f"v_lshlrev_b32 v{vIdx+r}, 4, v{vG}")
        if r:
            g(f"v_add_u32 v{vIdx+r}, {4*r}, v{vIdx+r}")
    mD = T+12
    rD = T+20
    for mtl in range(2):
        for r in range(4):
            g(f"ds_bpermute_b32 v{mD+mtl*4+r}, v{vIdx+r}, v{mA[mtl]}")
            g(f"ds_bpermute_b32 v{rD+mtl*4+r}, v{vIdx+r}, v{rA[mtl]}")
    g("s_nop 7")
    vCS = T+28
    g(f"s_mul_i32 s6, s{sW}, 384")
    g(f"s_add_u32 s6, s6, {CSOFF}")
    g(f"v_lshlrev_b32 v{vCS}, 2, v{vL15}")
    g(f"v_add_u32 v{vCS}, s6, v{vCS}")
    for nt in range(6):
        g(f"v_accvgpr_read_b32 v{T+29}, a{nt*4}")
        g(f"ds_write_b32 v{vCS}, v{T+29} offset:{nt*64}")
    g("s_waitcnt lgkmcnt(0)")
    g("s_barrier")
    stamp(g)
    vCSn = T+30; vCSq = T+31
    g(f"v_lshlrev_b32 v{vCSn}, 2, v{vL15}")
    g(f"v_add_u32 v{vCSn}, {CSOFF}, v{vCSn}")
    g(f"v_lshlrev_b32 v{vCSq}, 4, v{vG}")
    g(f"v_add_u32 v{vCSq}, {CSOFF}, v{vCSq}")
    CN = T+32
    CQ = T+48
    for nt in range(2,6):
        for w in range(4):
            g(f"ds_read_b32 v{CN+(nt-2)*4+w}, v{vCSn} offset:{w*384+nt*64}")
    for nt in range(2):
        for w in range(4):
            g(f"ds_read_b128 {vr(CQ+(nt*4+w)*4,4)}, v{vCSq} offset:{w*384+nt*64}")
    g("s_waitcnt lgkmcnt(0)")
    for nt in range(4):
        for w in range(1,4):
            g(f"v_add_f32 v{CN+nt*4}, v{CN+nt*4}, v{CN+nt*4+w}")
    for nt in range(2):
        for w in range(1,4):
            for r in range(4):
                g(f"v_add_f32 v{CQ+nt*16+r}, v{CQ+nt*16+r}, v{CQ+(nt*4+w)*4+r}")
    PQc = T+80
    tmpu = T+30
    for mtl in range(2):
        for nt in range(2):
            for r in range(4):
                a = acc(mtl,nt)+r
                g(f"v_fma_f32 v{a}, -v{mA[mtl]}, v{CQ+nt*16+r}, v{a}")
                g(f"v_mul_f32 v{a}, v{rA[mtl]}, v{a}")
                phi(g, a, tmpu)
            g(f"v_cvt_pk_bf16_f32 v{PQc+mtl*4+nt*2}, v{acc(mtl,nt)}, v{acc(mtl,nt)+1}")
            g(f"v_cvt_pk_bf16_f32 v{PQc+mtl*4+nt*2+1}, v{acc(mtl,nt)+2}, v{acc(mtl,nt)+3}")
    vPQ = T+31
    g(f"s_lshl_b32 s6, s{sW}, 15")
    g(f"v_lshlrev_b32 v{vPQ}, 4, v{vLane}")
    g(f"v_add_u32 v{vPQ}, s6, v{vPQ}")
    g(f"s_lshl_b32 s6, s{sI}, 17")
    g(f"s_lshl_b32 s7, s{sJ}, 10")
    g(f"s_add_u32 s6, s6, s7")
    g(f"s_add_u32 s6, s6, {WS_PQ}")
    g(f"s_add_u32 s7, s6, 16384")
    g(f"buffer_store_dwordx4 {vr(PQc,4)}, v{vPQ}, s[{sWS}:{sWS+3}], s6 offen")
    g(f"buffer_store_dwordx4 {vr(PQc+4,4)}, v{vPQ}, s[{sWS}:{sWS+3}], s7 offen")
    stamp(g)
    PK = T+88
    VV = T+96
    for nt in range(2,6):
        for mtl in range(2):
            for r in range(4):
                a = acc(mtl,nt)+r
                g(f"v_fma_f32 v{a}, -v{mD+mtl*4+r}, v{CN+(nt-2)*4}, v{a}")
                g(f"v_mul_f32 v{a}, v{rD+mtl*4+r}, v{a}")
                if nt < 4:
                    phi(g, a, tmpu)
            dst = (PK + (nt-2)*4 if nt < 4 else VV + (nt-4)*4) + mtl*2
            g(f"v_cvt_pk_bf16_f32 v{dst}, v{acc(mtl,nt)}, v{acc(mtl,nt)+1}")
            g(f"v_cvt_pk_bf16_f32 v{dst+1}, v{acc(mtl,nt)+2}, v{acc(mtl,nt)+3}")
    ON = T+104
    for q in range(4):
        g(f"v_mov_b32 v{ON+q}, s{sONES}")
    KVr = T+108
    Zr = T+116
    g("s_nop 1")
    for hh in range(2):
        g(f"v_mfma_f32_16x16x32_bf16 {vr(KVr+hh*4,4)}, {vr(PK+hh*4,4)}, {vr(VV+hh*4,4)}, 0")
        g(f"v_mfma_f32_16x16x32_bf16 {vr(Zr+hh*4,4)}, {vr(PK+hh*4,4)}, {vr(ON,4)}, 0")
    vR = T+30; vRz = T+31
    g(f"s_mul_i32 s6, s{sW}, 2176")
    g(f"v_lshlrev_b32 v{vR}, 6, v{vL15}")
    g(f"v_lshl_add_u32 v{vR}, v{vG}, 4, v{vR}")
    g(f"v_add_u32 v{vR}, s6, v{vR}")
    g(f"v_lshlrev_b32 v{vRz}, 4, v{vG}")
    g(f"v_add_u32 v{vRz}, s6, v{vRz}")
    g("s_nop 7")
    for hh in range(2):
        g(f"ds_write_b128 v{vR}, {vr(KVr+hh*4,4)} offset:{hh*1024}")
        g(f"ds_write_b128 v{vRz}, {vr(Zr+hh*4,4)} offset:{2048+hh*64}")
    g("s_waitcnt lgkmcnt(0)")
    g("s_barrier")
    stamp(g)
    vE = T+30
    g(f"v_lshlrev_b32 v{vE}, 2, v0")
    SUM = T+32
    for e in range(3):
        for w in range(4):
            g(f"ds_read_b32 v{SUM+e*4+w}, v{vE} offset:{w*2176+e*1024}")
    g("s_waitcnt lgkmcnt(0)")
    for e in range(3):
        for w in range(1,4):
            g(f"v_add_f32 v{SUM+e*4}, v{SUM+e*4}, v{SUM+e*4+w}")
    g(f"s_cmp_eq_u32 s{sI}, 0")
    g(f"s_cbranch_scc1 {name}_go")
    g("s_waitcnt vmcnt(0)")
    g(f"v_readfirstlane_b32 s6, v{vFlag}")
    g("s_cmp_lg_u32 s6, 0")
    g(f"s_cbranch_scc1 {name}_go")
    g.label(f"{name}_poll")
    g("s_sleep 1")
    g(f"buffer_load_dword v{vFlag}, v{T+3}, s[{sDBG}:{sDBG+3}], 0 offen sc0 sc1")
    g("s_waitcnt vmcnt(0)")
    g(f"v_readfirstlane_b32 s6, v{vFlag}")
    g("s_cmp_eq_u32 s6, 0")
    g(f"s_cbranch_scc1 {name}_poll")
    g.label(f"{name}_go")
    for e in range(3):
        g(f"buffer_atomic_add_f32 v{SUM+e*4}, v{vE}, s[{sKV}:{sKV+3}], 0 offen offset:{e*1024}")
    stamp(g); stamp_real(g, 1)
    stamp_flush(g, 0, sW, sWS)
    g.label(f"{name}_end")
    g("s_endpgm")
```

```python
from common import *
LDS = 131072 + 1024
VGPRS = 256
ACCUM = 256

def gen_k2(g, name="k2_kernel"):
    vLane, vG, vL15 = 1, 2, 3
    vT = 4
    vKVo, vPQo, vWo, vXo = 12, 13, 14, 15
    vTB = 16
    vOB = 20
    KV = 24
    PQ = 88
    XR = 152
    ACC = 160
    WF = 176
    OF = 192
    NUM = 208
    sRB, sCB, sW = 3, 4, 5
    sWO, sWS, sX = 8, 12, 16
    OBUF = 65536
    kernel_header(g, name)
    stamp_reset(); stamp(g); stamp_real(g, 0)
    g(f"""
    s_cmp_ge_u32 s2, 256
    s_cbranch_scc1 {name}_end
    s_load_dwordx2 s[36:37], s[0:1], 0
    s_load_dwordx2 s[38:39], s[0:1], 16
    s_load_dwordx2 s[42:43], s[0:1], 64
    s_and_b32 s6, s2, 7
    s_lshr_b32 s7, s6, 1
    s_lshl_b32 s{sRB}, s7, 3
    s_bfe_u32 s7, s2, 0x30003
    s_add_u32 s{sRB}, s{sRB}, s7
    s_and_b32 s7, s6, 1
    s_lshl_b32 s{sCB}, s7, 2
    s_lshr_b32 s7, s2, 6
    s_add_u32 s{sCB}, s{sCB}, s7
    v_and_b32 v{vLane}, 63, v0
    v_lshrrev_b32 v{vT}, 6, v0
    v_lshrrev_b32 v{vG}, 4, v{vLane}
    v_readfirstlane_b32 s{sW}, v{vT}
    v_and_b32 v{vL15}, 15, v{vLane}
    s_waitcnt lgkmcnt(0)
    """)
    g(f"s_lshl_b32 s6, s{sCB}, 7")
    g(f"s_add_u32 s{sWO}, s38, s6")
    g(f"s_addc_u32 s{sWO+1}, s39, 0")
    g(f"s_sub_u32 s{sWO+2}, 524288, s6")
    g(f"s_mov_b32 s{sWO+3}, 0x00020000")
    srd(g, sWS, "s42", "s43", WS_BYTES)
    g(f"s_lshl_b32 s7, s{sRB}, 16")
    g(f"s_add_u32 s6, s6, s7")
    g(f"s_add_u32 s{sX}, s36, s6")
    g(f"s_addc_u32 s{sX+1}, s37, 0")
    g(f"s_sub_u32 s{sX+2}, 2097152, s6")
    g(f"s_mov_b32 s{sX+3}, 0x00020000")
    g(f"v_lshlrev_b32 v{vKVo}, 6, v{vL15}")
    g(f"v_lshl_add_u32 v{vKVo}, v{vG}, 4, v{vKVo}")
    g(f"v_lshlrev_b32 v{vT}, 4, v{vG}")
    g(f"s_mul_i32 s6, s{sW}, {4*2176}")
    g(f"s_add_u32 s6, s6, {WS_KV}")
    for hl in range(4):
        for hh in range(2):
            g(f"s_add_u32 s7, s6, {hl*2176 + hh*1024}")
            g(f"buffer_load_dwordx4 {vr(KV+hl*16+hh*4,4)}, v{vKVo}, s[{sWS}:{sWS+3}], s7 offen")
        for hh in range(2):
            g(f"s_add_u32 s7, s6, {hl*2176 + 2048 + hh*64}")
            g(f"buffer_load_dwordx4 {vr(KV+hl*16+8+hh*4,4)}, v{vT}, s[{sWS}:{sWS+3}], s7 offen")
    g(f"v_lshlrev_b32 v{vPQo}, 4, v{vLane}")
    g(f"s_lshl_b32 s6, s{sRB}, 16")
    g(f"s_lshl_b32 s7, s{sW}, 12")
    g(f"s_add_u32 s6, s6, s7")
    g(f"s_add_u32 s6, s6, {WS_PQ}")
    for hl in range(4):
        for mt in range(4):
            g(f"s_add_u32 s7, s6, {mt*16384 + hl*1024}")
            g(f"buffer_load_dwordx4 {vr(PQ+(hl*4+mt)*4,4)}, v{vPQo}, s[{sWS}:{sWS+3}], s7 offen")
    g(f"""
    v_lshrrev_b32 v{vT}, 3, v{vLane}
    v_lshlrev_b32 v{vWo}, 10, v{vT}
    v_bfe_u32 v{vT}, v{vLane}, 1, 2
    v_bfe_u32 v{vT+1}, v{vLane}, 4, 2
    v_xor_b32 v{vT}, v{vT}, v{vT+1}
    v_and_b32 v{vT+1}, 1, v{vLane}
    v_lshl_or_b32 v{vT}, v{vT}, 1, v{vT+1}
    v_lshl_add_u32 v{vWo}, v{vT}, 4, v{vWo}
    """)
    g(f"s_lshl_b32 s6, s{sW}, 13")
    g(f"s_lshl_b32 s7, s{sW}, 10")
    for t in range(16):
        g(f"s_add_u32 m0, s7, {t*4096}")
        g(f"s_add_u32 s44, s6, {t*32768}")
        g(f"buffer_load_dwordx4 v{vWo}, s[{sWO}:{sWO+3}], s44 offen lds")
    g(f"s_lshr_b32 s6, s{sW}, 1")
    g(f"s_lshl_b32 s6, s6, 15")
    g(f"s_and_b32 s7, s{sW}, 1")
    g(f"s_lshl_b32 s7, s7, 6")
    g(f"s_add_u32 s6, s6, s7")
    g(f"v_lshlrev_b32 v{vXo}, 10, v{vL15}")
    g(f"v_lshl_add_u32 v{vXo}, v{vG}, 3, v{vXo}")
    g(f"s_add_u32 s7, s6, 16384")
    for ml in range(2):
        for nl in range(2):
            g(f"buffer_load_dwordx2 {vr(XR+(ml*2+nl)*2,2)}, v{vXo}, s[{sX}:{sX+3}], s{6+ml} offen offset:{nl*32}")
    g(f"""
    v_bfe_u32 v{vT}, v{vLane}, 2, 2
    v_lshl_add_u32 v{vT+1}, v{vG}, 2, v{vT}
    v_lshlrev_b32 v{vT+1}, 7, v{vT+1}
    v_and_b32 v{vT+2}, 3, v{vLane}
    v_lshl_add_u32 v{vT+1}, v{vT+2}, 3, v{vT+1}
    v_lshrrev_b32 v{vT}, 1, v{vT}
    v_lshl_add_u32 v{vT}, v{vG}, 1, v{vT}
    v_and_b32 v{vT}, 3, v{vT}
    """)
    for u in range(4):
        g(f"v_xor_b32 v{vT+2}, {u}, v{vT}")
        g(f"v_lshl_add_u32 v{vTB+u}, v{vT+2}, 5, v{vT+1}")
    g(f"v_lshlrev_b32 v{vOB}, 4, v{vLane}")
    stamp(g)
    g("s_waitcnt vmcnt(36)")
    stamp(g)
    for hl in range(4):
        for q in range(4):
            b = KV + hl*16 + q*4
            g(f"v_cvt_pk_bf16_f32 v{b}, v{b}, v{b+1}")
            g(f"v_cvt_pk_bf16_f32 v{b+1}, v{b+2}, v{b+3}")
    g("s_waitcnt vmcnt(20)")
    stamp(g)
    def s1_mfma(hl, mt, s):
        c = PQ + (hl*4+mt)*4; k = KV + hl*16; n = NUM + s*16
        g(f"v_mfma_f32_16x16x16_bf16 {vr(n,4)}, {vr(k,2)}, {vr(c,2)}, 0")
        g(f"v_mfma_f32_16x16x16_bf16 {vr(n+4,4)}, {vr(k+8,2)}, {vr(c,2)}, 0")
        g(f"v_mfma_f32_16x16x16_bf16 {vr(n+8,4)}, {vr(k+4,2)}, {vr(c+2,2)}, 0")
        g(f"v_mfma_f32_16x16x16_bf16 {vr(n+12,4)}, {vr(k+12,2)}, {vr(c+2,2)}, 0")
    def s1_post(hl, mt, s):
        n = NUM + s*16
        for hh in range(2):
            b = n + hh*8
            g(f"v_add_f32 v{b+4}, 0x358637bd, v{b+4}")
            g(f"v_rcp_f32 v{b+4}, v{b+4}")
            g("s_nop 0")
            for r in range(4):
                g(f"v_mul_f32 v{b+r}, v{b+r}, v{b+4}")
        g(f"v_cvt_pk_bf16_f32 v{n+4}, v{n}, v{n+1}")
        g(f"v_cvt_pk_bf16_f32 v{n+5}, v{n+2}, v{n+3}")
        g(f"v_cvt_pk_bf16_f32 v{n+6}, v{n+8}, v{n+9}")
        g(f"v_cvt_pk_bf16_f32 v{n+7}, v{n+10}, v{n+11}")
        g(f"ds_write_b128 v{vOB+1}, {vr(n+4,4)} offset:{mt*16384 + hl*1024}")
    g(f"s_lshl_b32 s6, s{sW}, 12")
    g(f"s_add_u32 s6, s6, {OBUF}")
    g(f"v_add_u32 v{vOB+1}, s6, v{vOB}")
    items = [(hl, mt) for hl in range(4) for mt in range(4)]
    g("s_nop 1")
    s1_mfma(*items[0], 0)
    for i in range(len(items)):
        if i+1 < len(items):
            s1_mfma(*items[i+1], (i+1)&1)
        else:
            g("s_nop 7")
        g("s_nop 3")
        s1_post(*items[i], i&1)
    stamp(g)
    g("s_waitcnt vmcnt(0) lgkmcnt(0)")
    g("s_barrier")
    stamp(g)
    g(f"s_lshr_b32 s6, s{sW}, 1")
    g(f"s_lshl_b32 s6, s6, 15")
    g(f"s_add_u32 s6, s6, {OBUF}")
    g(f"v_add_u32 v{vOB}, s6, v{vOB}")
    g(f"s_and_b32 s6, s{sW}, 1")
    g(f"s_cmp_eq_u32 s6, 0")
    g(f"s_cbranch_scc1 {name}_pw0")
    g(f"v_mov_b32 v{vTB}, v{vTB+2}")
    g(f"v_mov_b32 v{vTB+1}, v{vTB+3}")
    g.label(f"{name}_pw0")
    def s2_reads(ks, buf):
        for nl in range(2):
            g(f"ds_read_b64_tr_b16 {vr(WF+(buf*2+nl)*4,2)}, v{vTB+nl} offset:{ks*4096}")
            g(f"ds_read_b64_tr_b16 {vr(WF+(buf*2+nl)*4+2,2)}, v{vTB+nl} offset:{ks*4096+2048}")
        for ml in range(2):
            g(f"ds_read_b128 {vr(OF+(buf*2+ml)*4,4)}, v{vOB} offset:{ml*16384+ks*1024}")
    s2_reads(0, 0)
    for ks in range(16):
        buf = ks & 1
        if ks < 15:
            s2_reads(ks+1, buf^1)
            g("s_waitcnt lgkmcnt(6)")
        else:
            g("s_waitcnt lgkmcnt(0)")
        for ml in range(2):
            for nl in range(2):
                a = ACC + (ml*2+nl)*4
                c = "0" if ks == 0 else vr(a,4)
                g(f"v_mfma_f32_16x16x32_bf16 {vr(a,4)}, {vr(WF+(buf*2+nl)*4,4)}, {vr(OF+(buf*2+ml)*4,4)}, {c}")
    stamp(g)
    g("s_nop 7")
    g("s_nop 1")
    for ml in range(2):
        HC = OF + ml*4
        g(f"v_mov_b32 v{vT}, 0")
        g(f"v_mov_b32 v{vT+1}, 0")
        for nl in range(2):
            a = ACC + (ml*2+nl)*4
            x0 = XR + (ml*2+nl)*2
            for pr in range(2):
                r0, r1 = a+2*pr, a+2*pr+1
                g(f"v_cvt_pk_bf16_f32 v{vT+2}, v{r0}, v{r1}")
                g(f"v_lshlrev_b32 v{r0}, 16, v{vT+2}")
                g(f"v_and_b32 v{r1}, 0xffff0000, v{vT+2}")
                g(f"v_lshlrev_b32 v{vT+2}, 16, v{x0+pr}")
                g(f"v_and_b32 v{vT+3}, 0xffff0000, v{x0+pr}")
                g(f"v_add_f32 v{r0}, v{r0}, v{vT+2}")
                g(f"v_add_f32 v{r1}, v{r1}, v{vT+3}")
                g(f"v_cvt_pk_bf16_f32 v{HC+nl*2+pr}, v{r0}, v{r1}")
                g(f"v_dot2_f32_bf16 v{vT}, v{HC+nl*2+pr}, s45, v{vT}") if False else None
        g(f"s_mov_b32 s45, 0x3f803f80")
        for q in range(4):
            g(f"v_dot2_f32_bf16 v{vT}, v{HC+q}, s45, v{vT}")
            g(f"v_dot2_f32_bf16 v{vT+1}, v{HC+q}, v{HC+q}, v{vT+1}")
        reduce_g(g, vT, vT+2)
        reduce_g(g, vT+1, vT+2)
        g(f"s_lshr_b32 s6, s{sW}, 1")
        g(f"s_lshl_b32 s6, s6, 1")
        g(f"s_lshl_b32 s7, s{sRB}, 2")
        g(f"s_add_u32 s6, s6, s7")
        g(f"s_add_u32 s6, s6, {ml}")
        g(f"s_lshl_b32 s46, s6, 14")
        g(f"s_lshl_b32 s7, s{sCB}, 1")
        g(f"s_and_b32 s47, s{sW}, 1")
        g(f"s_add_u32 s7, s7, s47")
        g(f"s_lshl_b32 s47, s7, 10")
        g(f"s_add_u32 s46, s46, s47")
        g(f"s_add_u32 s46, s46, {WS_H}")
        g(f"v_lshlrev_b32 v{vT+3}, 4, v{vLane}")
        g(f"buffer_store_dwordx4 {vr(HC,4)}, v{vT+3}, s[{sWS}:{sWS+3}], s46 offen")
        g(f"s_lshl_b32 s6, s6, 11")
        g(f"s_lshl_b32 s7, s7, 3")
        g(f"s_add_u32 s6, s6, s7")
        g(f"s_add_u32 s6, s6, {WS_STAT}")
        g(f"v_lshlrev_b32 v{vT+3}, 7, v{vL15}")
        g("s_mov_b64 exec, 0xffff")
        g(f"buffer_store_dwordx2 {vr(vT,2)}, v{vT+3}, s[{sWS}:{sWS+3}], s6 offen")
        g("s_mov_b64 exec, -1")
    stamp(g); stamp_real(g, 1)
    stamp_flush(g, 1, sW, sWS)
    g.label(f"{name}_end")
    g("s_endpgm")
```

```python
from common import *
LDS = 131072 + 2048
VGPRS = 256 + 104
ACCUM = 256

def gen_k3(g, name="k3_kernel"):
    vLane, vG, vL15 = 1, 2, 3
    vT = 4
    vWo, vAo = 12, 13
    vS = 14
    vTB = 20
    WF = 36
    AF = 100
    ST = 228
    sRB, sCB, sW = 3, 4, 5
    sW1, sWS = 8, 12
    sONES = 30
    CSOFF = 131072
    def af(ml, ks): return AF + (ml*16+ks)*4
    def wf(buf,u): return WF + (buf*8+u)*4
    def acc(ml,u): return (ml*8+u)*4
    CSA = 64; ONE = 96
    kernel_header(g, name)
    stamp_reset(); stamp(g); stamp_real(g, 0)
    g(f"""
    s_cmp_ge_u32 s2, 224
    s_cbranch_scc1 {name}_end
    s_load_dwordx2 s[38:39], s[0:1], 32
    s_load_dwordx2 s[42:43], s[0:1], 64
    s_and_b32 s6, s2, 7
    s_lshr_b32 s7, s6, 1
    s_lshl_b32 s{sRB}, s7, 2
    s_bfe_u32 s7, s2, 0x20003
    s_add_u32 s{sRB}, s{sRB}, s7
    s_and_b32 s7, s6, 1
    s_mul_i32 s{sCB}, s7, 7
    s_lshr_b32 s7, s2, 5
    s_add_u32 s{sCB}, s{sCB}, s7
    v_and_b32 v{vLane}, 63, v0
    v_lshrrev_b32 v{vT}, 6, v0
    v_lshrrev_b32 v{vG}, 4, v{vLane}
    v_readfirstlane_b32 s{sW}, v{vT}
    v_and_b32 v{vL15}, 15, v{vLane}
    s_mov_b32 s{sONES}, 0x3f803f80
    s_waitcnt lgkmcnt(0)
    """)
    g(f"s_lshl_b32 s6, s{sCB}, 8")
    g(f"s_add_u32 s{sW1}, s38, s6")
    g(f"s_addc_u32 s{sW1+1}, s39, 0")
    g(f"s_sub_u32 s{sW1+2}, 1835008, s6")
    g(f"s_mov_b32 s{sW1+3}, 0x00020000")
    srd(g, sWS, "s42", "s43", WS_BYTES)
    g(f"s_and_b32 s6, s{sW}, 1")
    g(f"s_lshl_b32 s6, s6, 2")
    g(f"v_mul_u32_u24 v{vWo}, 3584, v{vG}")
    g(f"v_add_u32 v{vT}, s6, v{vG}")
    g(f"v_bfe_u32 v{vT+1}, v{vLane}, 1, 3")
    g(f"v_xor_b32 v{vT}, v{vT}, v{vT+1}")
    g(f"v_and_b32 v{vT+1}, 1, v{vLane}")
    g(f"v_lshl_or_b32 v{vT}, v{vT}, 1, v{vT+1}")
    g(f"v_lshl_add_u32 v{vWo}, v{vT}, 4, v{vWo}")
    g(f"v_lshlrev_b32 v{vAo}, 4, v{vLane}")
    g(f"s_lshl_b32 s6, s{sRB}, 3")
    g(f"s_lshl_b32 s7, s{sW}, 1")
    g(f"s_add_u32 s6, s6, s7")
    g(f"s_lshl_b32 s46, s6, 14")
    g(f"s_add_u32 s46, s46, {WS_H}")
    g(f"s_lshl_b32 s47, s6, 11")
    g(f"s_add_u32 s47, s47, {WS_STAT}")
    g(f"v_lshlrev_b32 v{vT}, 7, v{vL15}")
    g(f"v_lshl_add_u32 v{vT}, v{vG}, 5, v{vT}")
    for ml in range(2):
        g(f"s_add_u32 s7, s47, {ml*2048}")
        g(f"buffer_load_dwordx4 {vr(ST+ml*8,4)}, v{vT}, s[{sWS}:{sWS+3}], s7 offen")
        g(f"buffer_load_dwordx4 {vr(ST+ml*8+4,4)}, v{vT}, s[{sWS}:{sWS+3}], s7 offen offset:16")
    g(f"s_lshl_b32 s44, s{sW}, 10")
    g(f"s_mul_i32 s45, s{sW}, {4*3584}")
    for f in range(4):
        for t in range(8*f, 8*f+8):
            g(f"s_add_u32 m0, s44, {t*4096}")
            g(f"s_add_u32 s7, s45, {t*16*3584}")
            g(f"buffer_load_dwordx4 v{vWo}, s[{sW1}:{sW1+3}], s7 offen lds")
        for ks in range(4*f, 4*f+4):
            for ml in range(2):
                g(f"s_add_u32 s7, s46, {ml*16384 + ks*1024}")
                g(f"buffer_load_dwordx4 {vr(af(ml,ks),4)}, v{vAo}, s[{sWS}:{sWS+3}], s7 offen")
    g(f"""
    v_bfe_u32 v{vT}, v{vLane}, 2, 2
    v_lshl_add_u32 v{vT+1}, v{vG}, 2, v{vT}
    v_lshlrev_b32 v{vT+2}, 8, v{vT+1}
    v_and_b32 v{vT+3}, 3, v{vLane}
    v_lshl_add_u32 v{vT+2}, v{vT+3}, 3, v{vT+2}
    v_and_b32 v{vT+1}, 7, v{vT+1}
    """)
    for u in range(8):
        g(f"v_xor_b32 v{vT+3}, {u}, v{vT+1}")
        g(f"v_lshl_add_u32 v{vTB+u}, v{vT+3}, 5, v{vT+2}")
        g(f"v_add_u32 v{vTB+8+u}, 0x10000, v{vTB+u}")
    g(f"v_mov_b32 v{vT}, s{sONES}")
    for q in range(4):
        g(f"v_accvgpr_write_b32 a{ONE+q}, v{vT}")
    stamp(g)
    def reads(ks, buf):
        for u in range(8):
            base = vTB + u + (8 if ks >= 8 else 0)
            off = (ks & 7)*8192
            g(f"ds_read_b64_tr_b16 {vr(wf(buf,u),2)}, v{base} offset:{off}")
            g(f"ds_read_b64_tr_b16 {vr(wf(buf,u)+2,2)}, v{base} offset:{off+4096}")
    for f in range(4):
        g(f"s_waitcnt vmcnt({64 - 16*(f+1)})")
        g("s_barrier")
        stamp(g)
        reads(4*f, 0)
        for ks in range(4*f, 4*f+4):
            buf = (ks-4*f)&1
            if ks < 4*f+3:
                reads(ks+1, buf^1)
                g("s_waitcnt lgkmcnt(15)")
            else:
                g("s_waitcnt lgkmcnt(0)")
            for ml in range(2):
                for u in range(8):
                    c = "0" if ks == 0 else ar(acc(ml,u),4)
                    g(f"v_mfma_f32_16x16x32_bf16 {ar(acc(ml,u),4)}, {vr(wf(buf,u),4)}, {vr(af(ml,ks),4)}, {c}")
            g(f"s_cmp_lg_u32 s{sW}, {f}")
            g(f"s_cbranch_scc1 {name}_nocs{ks}")
            for u in range(8):
                c = "0" if ks == 4*f else ar(CSA+u*4,4)
                g(f"v_mfma_f32_16x16x32_bf16 {ar(CSA+u*4,4)}, {vr(wf(buf,u),4)}, {ar(ONE,4)}, {c}")
            g.label(f"{name}_nocs{ks}")
    stamp(g)
    for ml in range(2):
        b = ST + ml*8
        g(f"v_add_f32 v{b}, v{b}, v{b+2}")
        g(f"v_add_f32 v{b+1}, v{b+1}, v{b+3}")
        g(f"v_add_f32 v{b+4}, v{b+4}, v{b+6}")
        g(f"v_add_f32 v{b+5}, v{b+5}, v{b+7}")
        g(f"v_add_f32 v{b}, v{b}, v{b+4}")
        g(f"v_add_f32 v{b+1}, v{b+1}, v{b+5}")
        reduce_g(g, b, vT)
        reduce_g(g, b+1, vT)
        ln_stats(g, b, b+1, b+2, b+3, vT)
    g("s_nop 7")
    T = AF
    g(f"s_lshl_b32 s6, s{sW}, 9")
    g(f"s_add_u32 s6, s6, {CSOFF}")
    g(f"v_lshlrev_b32 v{vT}, 4, v{vG}")
    g(f"v_add_u32 v{vT+1}, s6, v{vT}")
    g(f"v_add_u32 v{vT}, {CSOFF}, v{vT}")
    for u in range(8):
        for r in range(4):
            g(f"v_accvgpr_read_b32 v{T+r}, a{CSA+u*4+r}")
        g(f"ds_write_b128 v{vT+1}, {vr(T,4)} offset:{u*64}")
    g("s_waitcnt lgkmcnt(0)")
    g("s_barrier")
    stamp(g)
    CS = T
    for u in range(8):
        g(f"ds_read_b128 {vr(CS+u*4,4)}, v{vT} offset:{u*64}")
    for w in range(1,4):
        for u in range(8):
            g(f"ds_read_b128 {vr(T+32+u*4,4)}, v{vT} offset:{w*512+u*64}")
        g("s_waitcnt lgkmcnt(0)")
        for u in range(8):
            for r in range(4):
                g(f"v_add_f32 v{CS+u*4+r}, v{CS+u*4+r}, v{T+32+u*4+r}")
    Y = T+64
    HC = WF
    g(f"v_lshlrev_b32 v{vT+2}, 4, v{vLane}")
    for ml in range(2):
        m, rs = ST+ml*8+2, ST+ml*8+3
        for pl in range(4):
            for nl in range(2):
                u = pl*2+nl
                for r in range(4):
                    y = Y + r
                    g(f"v_accvgpr_read_b32 v{y}, a{acc(ml,u)+r}")
                    g(f"v_fma_f32 v{y}, -v{m}, v{CS+u*4+r}, v{y}")
                    g(f"v_mul_f32 v{y}, v{rs}, v{y}")
                    g(f"v_mul_f32 v{Y+4+r}, 0xbfb8aa3b, v{y}")
                    g(f"v_exp_f32 v{Y+4+r}, v{Y+4+r}")
                for r in range(4):
                    g(f"v_add_f32 v{Y+4+r}, 1.0, v{Y+4+r}")
                    g(f"v_rcp_f32 v{Y+4+r}, v{Y+4+r}")
                for r in range(4):
                    g(f"v_mul_f32 v{Y+r}, v{Y+r}, v{Y+4+r}")
                h = HC + (ml*4+pl)*4 + nl*2
                g(f"v_cvt_pk_bf16_f32 v{h}, v{Y}, v{Y+1}")
                g(f"v_cvt_pk_bf16_f32 v{h+1}, v{Y+2}, v{Y+3}")
    g(f"s_lshl_b32 s6, s{sRB}, 3")
    g(f"s_lshl_b32 s7, s{sW}, 1")
    g(f"s_add_u32 s6, s6, s7")
    g(f"s_mul_i32 s6, s6, 56")
    g(f"s_lshl_b32 s7, s{sCB}, 2")
    g(f"s_add_u32 s6, s6, s7")
    g(f"s_lshl_b32 s6, s6, 10")
    g(f"s_add_u32 s6, s6, {WS_H1}")
    for ml in range(2):
        for pl in range(4):
            g(f"s_add_u32 s7, s6, {(ml*56+pl)*1024}")
            g(f"buffer_store_dwordx4 {vr(HC+(ml*4+pl)*4,4)}, v{vT+2}, s[{sWS}:{sWS+3}], s7 offen")
    stamp(g); stamp_real(g, 1)
    stamp_flush(g, 2, sW, sWS)
    g.label(f"{name}_end")
    g("s_endpgm")
```

```python
from common import *
LDS = 131072
VGPRS = 256
ACCUM = 256

def gen_k4(g, name="k4_kernel"):
    vLane, vG, vL15 = 1, 2, 3
    vT = 4
    vWo, vAo = 12, 13
    vTB = 16
    HR = 20
    ACC = 28
    WF = 44
    AR = 76
    sRB, sCB, sW = 3, 4, 5
    sW2, sWS, sOUT = 8, 12, 16
    NCH = 14
    kernel_header(g, name)
    stamp_reset(); stamp(g); stamp_real(g, 0)
    g(f"""
    s_cmp_ge_u32 s2, 256
    s_cbranch_scc1 {name}_end
    s_load_dwordx2 s[38:39], s[0:1], 40
    s_load_dwordx2 s[40:41], s[0:1], 48
    s_load_dwordx2 s[42:43], s[0:1], 64
    s_and_b32 s6, s2, 7
    s_lshr_b32 s7, s6, 1
    s_lshl_b32 s{sRB}, s7, 3
    s_bfe_u32 s7, s2, 0x30003
    s_add_u32 s{sRB}, s{sRB}, s7
    s_and_b32 s7, s6, 1
    s_lshl_b32 s{sCB}, s7, 2
    s_lshr_b32 s7, s2, 6
    s_add_u32 s{sCB}, s{sCB}, s7
    v_and_b32 v{vLane}, 63, v0
    v_lshrrev_b32 v{vT}, 6, v0
    v_lshrrev_b32 v{vG}, 4, v{vLane}
    v_readfirstlane_b32 s{sW}, v{vT}
    v_and_b32 v{vL15}, 15, v{vLane}
    s_waitcnt lgkmcnt(0)
    """)
    g(f"s_lshl_b32 s6, s{sCB}, 7")
    g(f"s_add_u32 s{sW2}, s38, s6")
    g(f"s_addc_u32 s{sW2+1}, s39, 0")
    g(f"s_sub_u32 s{sW2+2}, 1835008, s6")
    g(f"s_mov_b32 s{sW2+3}, 0x00020000")
    srd(g, sWS, "s42", "s43", WS_BYTES)
    srd(g, sOUT, "s40", "s41", 2097152)
    g(f"""
    v_lshrrev_b32 v{vT}, 3, v{vLane}
    v_lshlrev_b32 v{vWo}, 10, v{vT}
    v_bfe_u32 v{vT}, v{vLane}, 1, 2
    v_bfe_u32 v{vT+1}, v{vLane}, 4, 2
    v_xor_b32 v{vT}, v{vT}, v{vT+1}
    v_and_b32 v{vT+1}, 1, v{vLane}
    v_lshl_or_b32 v{vT}, v{vT}, 1, v{vT+1}
    v_lshl_add_u32 v{vWo}, v{vT}, 4, v{vWo}
    v_lshlrev_b32 v{vAo}, 4, v{vLane}
    """)
    g(f"s_lshl_b32 s6, s{sRB}, 2")
    g(f"s_add_u32 s6, s6, s{sW}")
    g(f"s_mul_i32 s46, s6, {56*1024}")
    g(f"s_add_u32 s46, s46, {WS_H1}")
    g(f"s_lshl_b32 s47, s6, 14")
    g(f"s_lshl_b32 s7, s{sCB}, 11")
    g(f"s_add_u32 s47, s47, s7")
    g(f"s_add_u32 s47, s47, {WS_H}")
    g(f"s_lshl_b32 s44, s{sW}, 10")
    g(f"s_lshl_b32 s45, s{sW}, 13")
    def issue(c):
        slot = c % 8
        for t in range(4):
            g(f"s_add_u32 m0, s44, {slot*16384 + t*4096}")
            g(f"s_add_u32 s7, s45, {c*131072 + t*32768}")
            g(f"buffer_load_dwordx4 v{vWo}, s[{sW2}:{sW2+3}], s7 offen lds")
        for q in range(4):
            g(f"s_add_u32 s7, s46, {(c*4+q)*1024}")
            g(f"buffer_load_dwordx4 {vr(AR+(slot*4+q)*4,4)}, v{vAo}, s[{sWS}:{sWS+3}], s7 offen")
    for pl in range(2):
        g(f"buffer_load_dwordx4 {vr(HR+pl*4,4)}, v{vAo}, s[{sWS}:{sWS+3}], s47 offen offset:{pl*1024}")
    for c in range(7):
        issue(c)
    g(f"""
    v_bfe_u32 v{vT}, v{vLane}, 2, 2
    v_lshl_add_u32 v{vT+1}, v{vG}, 2, v{vT}
    v_lshlrev_b32 v{vT+1}, 7, v{vT+1}
    v_and_b32 v{vT+2}, 3, v{vLane}
    v_lshl_add_u32 v{vT+1}, v{vT+2}, 3, v{vT+1}
    v_lshrrev_b32 v{vT}, 1, v{vT}
    v_lshl_add_u32 v{vT}, v{vG}, 1, v{vT}
    v_and_b32 v{vT}, 3, v{vT}
    """)
    for u in range(4):
        g(f"v_xor_b32 v{vT+2}, {u}, v{vT}")
        g(f"v_lshl_add_u32 v{vTB+u}, v{vT+2}, 5, v{vT+1}")
    stamp(g)
    def reads(slot, q, buf):
        for u in range(4):
            off = slot*16384 + q*4096
            hi = off >= 65536
            base = vTB + u
            o2 = off - (65536 if hi else 0)
            bb = f"v{base}" if not hi else f"v{vT+4+u}"
            g(f"ds_read_b64_tr_b16 {vr(WF+(buf*4+u)*4,2)}, {bb} offset:{o2}")
            g(f"ds_read_b64_tr_b16 {vr(WF+(buf*4+u)*4+2,2)}, {bb} offset:{o2+2048}")
    for u in range(4):
        g(f"v_add_u32 v{vT+4+u}, 0x10000, v{vTB+u}")
    for c in range(NCH):
        slot = c % 8
        rem = NCH - 1 - c
        inflight = min(6, rem)
        g(f"s_waitcnt vmcnt({inflight*8})")
        g("s_barrier")
        if c + 7 < NCH:
            issue(c+7)
        reads(slot, 0, 0)
        for q in range(4):
            buf = q & 1
            if q < 3:
                reads(slot, q+1, buf^1)
                g("s_waitcnt lgkmcnt(8)")
            else:
                g("s_waitcnt lgkmcnt(0)")
            for u in range(4):
                c0 = "0" if (c == 0 and q == 0) else vr(ACC+u*4,4)
                g(f"v_mfma_f32_16x16x32_bf16 {vr(ACC+u*4,4)}, {vr(WF+(buf*4+u)*4,4)}, {vr(AR+(slot*4+q)*4,4)}, {c0}")
    stamp(g)
    g("s_nop 7")
    g("s_nop 1")
    g(f"v_lshlrev_b32 v{vT}, 10, v{vL15}")
    g(f"v_lshl_add_u32 v{vT}, v{vG}, 3, v{vT}")
    g(f"s_lshl_b32 s6, s{sRB}, 2")
    g(f"s_add_u32 s6, s6, s{sW}")
    g(f"s_lshl_b32 s6, s6, 14")
    g(f"s_lshl_b32 s7, s{sCB}, 7")
    g(f"s_add_u32 s6, s6, s7")
    for pl in range(2):
        for nl in range(2):
            u = pl*2+nl
            a = ACC + u*4
            for pr in range(2):
                r0, r1 = a+2*pr, a+2*pr+1
                hx = HR + pl*4 + nl*2 + pr
                g(f"v_cvt_pk_bf16_f32 v{vT+2}, v{r0}, v{r1}")
                g(f"v_lshlrev_b32 v{r0}, 16, v{vT+2}")
                g(f"v_and_b32 v{r1}, 0xffff0000, v{vT+2}")
                g(f"v_lshlrev_b32 v{vT+2}, 16, v{hx}")
                g(f"v_and_b32 v{vT+3}, 0xffff0000, v{hx}")
                g(f"v_add_f32 v{r0}, v{r0}, v{vT+2}")
                g(f"v_add_f32 v{r1}, v{r1}, v{vT+3}")
                g(f"v_cvt_pk_bf16_f32 v{a+pr}, v{r0}, v{r1}")
            g(f"buffer_store_dwordx2 {vr(a,2)}, v{vT}, s[{sOUT}:{sOUT+3}], s6 offen offset:{pl*64+nl*32}")
    stamp(g); stamp_real(g, 1)
    stamp_flush(g, 3, sW, sWS)
    g.label(f"{name}_end")
    g("s_endpgm")
```

```python
import sys
from common import *
import k1

OUT = "sequential_preLN__linear_attn_block__dense_activation_silu__prompt.s"
HEADER = open("sequential_preLN__linear_attn_block__dense_activation_silu__prompt.s.ref").read().split("; Override launch")[0]

def main(stages):
    g = G()
    launches = []
    descs = []
    if "k1" in stages:
        R = k1.gen_k1(g)
        k1.gen_k1_epilogue(g, R)
        launches.append("; @launch kernel=k1_kernel grid=(256,1,1) block=(256,1,1) lds=100352")
        descs.append(kernel_desc("k1_kernel", 288, 102, 256))
    if "k2" in stages:
        import k2
        k2.gen_k2(g)
        launches.append(f"; @launch kernel=k2_kernel grid=(256,1,1) block=(256,1,1) lds={k2.LDS}")
        descs.append(kernel_desc("k2_kernel", k2.VGPRS, 64, k2.ACCUM))
    if "k3" in stages:
        import k3
        k3.gen_k3(g)
        launches.append(f"; @launch kernel=k3_kernel grid=(256,1,1) block=(256,1,1) lds={k3.LDS}")
        descs.append(kernel_desc("k3_kernel", k3.VGPRS, 64, k3.ACCUM))
    if "k4" in stages:
        import k4
        k4.gen_k4(g)
        launches.append(f"; @launch kernel=k4_kernel grid=(256,1,1) block=(256,1,1) lds={k4.LDS}")
        descs.append(kernel_desc("k4_kernel", k4.VGPRS, 64, k4.ACCUM))
    txt = HEADER + "\n".join(launches) + "\n"
    txt += '.amdgcn_target "amdgcn-amd-amdhsa--gfx950"\n.text\n'
    txt += g.text()
    txt += '.section .rodata,"a"\n.p2align 6\n' + "\n.p2align 6\n".join(descs)
    open(OUT, "w").write(txt)
    print("wrote", OUT, len(txt), "bytes")

if __name__ == "__main__":
    main(sys.argv[1:] or ["k1","k2","k3","k4"])
```

```python
WS_PQ   = 0x000000
WS_KV   = 0x200000
WS_H    = 0x400000
WS_STAT = 0x600000
WS_H1   = 0x800000
WS_BYTES = 268435456

class G:
    def __init__(self):
        self.L = []
    def __call__(self, s):
        for line in s.strip("\n").split("\n"):
            line = line.strip()
            if line:
                self.L.append("  " + line)
    def label(self, s):
        self.L.append(s + ":")
    def raw(self, s):
        self.L.append(s)
    def text(self):
        return "\n".join(self.L) + "\n"

def vr(base, n=1):
    return f"v{base}" if n == 1 else f"v[{base}:{base+n-1}]"
def ar(base, n=1):
    return f"a{base}" if n == 1 else f"a[{base}:{base+n-1}]"
def sr(base, n=1):
    return f"s{base}" if n == 1 else f"s[{base}:{base+n-1}]"

def kernel_header(g, name):
    g.raw(f".globl {name}")
    g.raw(".p2align 8")
    g.raw(f".type {name},@function")
    g.label(name)

def kernel_desc(name, vgpr, sgpr, accum):
    return f"""
.amdhsa_kernel {name}
  .amdhsa_next_free_vgpr {vgpr}
  .amdhsa_next_free_sgpr {sgpr}
  .amdhsa_accum_offset {accum}
  .amdhsa_group_segment_fixed_size 0
  .amdhsa_kernarg_size 72
  .amdhsa_user_sgpr_count 2
  .amdhsa_user_sgpr_kernarg_segment_ptr 1
  .amdhsa_system_sgpr_workgroup_id_x 1
.end_amdhsa_kernel
"""

def srd(g, s, base_lo, base_hi, nbytes):
    g(f"s_mov_b32 s{s}, {base_lo}")
    g(f"s_mov_b32 s{s+1}, {base_hi}")
    if nbytes is not None:
        g(f"s_mov_b32 s{s+2}, {nbytes}")
    g(f"s_mov_b32 s{s+3}, 0x00020000")

def round_bf16(g, v):
    g(f"v_cvt_pk_bf16_f32 v{v}, v{v}, v{v}")
    g(f"v_lshlrev_b32 v{v}, 16, v{v}")

def reduce_g(g, v, t):
    g(f"v_mov_b32 v{t}, v{v}")
    g("s_nop 1")
    g(f"v_permlane16_swap_b32 v{v}, v{t}")
    g(f"v_add_f32 v{v}, v{v}, v{t}")
    g(f"v_mov_b32 v{t}, v{v}")
    g("s_nop 1")
    g(f"v_permlane32_swap_b32 v{v}, v{t}")
    g(f"v_add_f32 v{v}, v{v}, v{t}")

def ln_stats(g, vsum, vsq, vm, vr_, t):
    g(f"v_mul_f32 v{vm}, 0x3b000000, v{vsum}")
    g(f"v_mul_f32 v{t}, 0x3b000000, v{vsq}")
    g(f"v_fma_f32 v{t}, -v{vm}, v{vm}, v{t}")
    g(f"v_max_f32 v{t}, 0, v{t}")
    round_bf16(g, vm)
    round_bf16(g, t)
    g(f"v_add_f32 v{t}, 0x3727c5ac, v{t}")
    round_bf16(g, t)
    g(f"v_sqrt_f32 v{t}, v{t}")
    g("s_nop 0")
    round_bf16(g, t)
    g(f"v_rcp_f32 v{vr_}, v{t}")
    g("s_nop 0")

def phi(g, t, u):
    g(f"v_min_f32 v{u}, 0, v{t}")
    g(f"v_mul_f32 v{u}, 0x3fb8aa3b, v{u}")
    g(f"v_exp_f32 v{u}, v{u}")
    g(f"v_max_f32 v{t}, 0, v{t}")
    g(f"v_add_f32 v{t}, 0x358637bd, v{t}")
    g(f"v_add_f32 v{t}, v{t}, v{u}")


import os
STAMPS = bool(os.environ.get("STAMPS"))
WS_DBG = 0x2000000
_stamp_n = [0]
def stamp_reset(): _stamp_n[0] = 0
def stamp(g):
    if not STAMPS: return
    i = _stamp_n[0]; _stamp_n[0] += 1
    g(f"s_memtime s[60:61]")
    g("s_waitcnt lgkmcnt(0)")
    g(f"s_mov_b32 s{64+i}, s60")
def stamp_real(g, idx):
    if not STAMPS: return
    g(f"s_memrealtime s[60:61]")
    g("s_waitcnt lgkmcnt(0)")
    g(f"s_mov_b32 s{96+idx}, s60")
def stamp_flush(g, kidx, sW, sWS):
    if not STAMPS: return
    n = _stamp_n[0]
    g("v_mov_b32 v8, 0")
    for i in range(n):
        g(f"v_writelane_b32 v8, s{64+i}, {i}")
    g(f"v_writelane_b32 v8, s96, 30")
    g(f"v_writelane_b32 v8, s97, 31")
    g(f"s_lshl_b32 s60, s2, 2")
    g(f"s_add_u32 s60, s60, s{sW}")
    g(f"s_lshl_b32 s60, s60, 7")
    g(f"s_add_u32 s60, s60, {WS_DBG + kidx*131072}")
    g("v_and_b32 v9, 63, v0")
    g("v_lshlrev_b32 v9, 2, v9")
    g("s_mov_b64 exec, 0xffffffff")
    g(f"buffer_store_dword v8, v9, s[{sWS}:{sWS+3}], s60 offen")
    g("s_mov_b64 exec, -1")


def l2_prefetch(g, srd_s, vtmp, vdst, lanes_per_row_log2, pitch, s_base, n_instr, rows_per_instr):
    L = lanes_per_row_log2
    g(f"v_lshrrev_b32 v{vtmp}, {L}, v0")
    g(f"v_and_b32 v{vtmp}, {(64 >> L) - 1}, v{vtmp}")
    g(f"s_mov_b32 s49, {pitch}")
    g(f"v_mul_lo_u32 v{vtmp}, s49, v{vtmp}")
    g(f"v_and_b32 v{vdst}, {(1 << L) - 1}, v0")
    g(f"v_lshl_add_u32 v{vtmp}, v{vdst}, 6, v{vtmp}")
    for i in range(n_instr):
        g(f"s_add_u32 s49, s{s_base}, {i*rows_per_instr*pitch}")
        g(f"buffer_load_dword v{vdst}, v{vtmp}, s[{srd_s}:{srd_s+3}], s49 offen")
```

```python
from common import *

class KG(G):
    def __init__(self):
        super().__init__()
        self.vm = []
    def reset_vm(self):
        self.vm = []
    def vmem(self, text, tag):
        self(text); self.vm.append(tag)
    def wait_tag(self, tag):
        idx = [i for i, t in enumerate(self.vm) if t == tag]
        if not idx:
            return
        n = len(self.vm) - 1 - idx[-1]
        self(f"s_waitcnt vmcnt({min(n, 63)})")
    def emit_item(self, it):
        if isinstance(it, str):
            self(it)
        elif isinstance(it, tuple):
            self.vmem(it[1], it[2])
        else:
            for x in it: self.emit_item(x)
    def interleave(self, main, side):
        n, m = len(main), len(side)
        j = 0
        for i, ins in enumerate(main):
            self(ins)
            tgt = ((i + 1) * m + n - 1) // n if n else m
            while j < min(tgt, m):
                self.emit_item(side[j]); j += 1
        while j < m:
            self.emit_item(side[j]); j += 1
```

```python
import os
from core import *
LDS = 147456 + 2048
VGPRS = 256
ACCUM = 256
KVB = 4352

def gen_k1(g, name="k1_kernel"):
    g.reset_vm()
    vLane, vG, vL15 = 1, 2, 3
    vT = 4
    vAo, vWo = 10, 11
    vM = 12
    vS = 14
    vTB = 16
    ACC = 20
    WF = 68
    AF = 164
    XT = 228
    sRB, sHG, sW = 3, 4, 5
    sX, sWt, sWS, sDBG, sKV = 8, 12, 16, 20, 24
    sONES, sZ = 30, 31
    NCH, NS, PD = 4, 3, 2
    def acc(u): return ACC + u*4
    def wf(buf,u): return WF + (buf*12+u)*4
    def af(ks): return AF + ks*4
    kernel_header(g, name)
    stamp_reset(); stamp(g); stamp_real(g, 0)
    g(f"""
    s_cmp_ge_u32 s2, 256
    s_cbranch_scc1 {name}_end
    s_load_dwordx2 s[36:37], s[0:1], 0
    s_load_dwordx2 s[38:39], s[0:1], 8
    s_load_dwordx2 s[40:41], s[0:1], 56
    s_load_dwordx2 s[42:43], s[0:1], 64
    s_and_b32 s6, s2, 7
    s_lshr_b32 s7, s6, 1
    s_lshl_b32 s{sRB}, s7, 3
    s_bfe_u32 s7, s2, 0x30003
    s_add_u32 s{sRB}, s{sRB}, s7
    s_and_b32 s7, s6, 1
    s_lshl_b32 s{sHG}, s7, 2
    s_lshr_b32 s7, s2, 6
    s_add_u32 s{sHG}, s{sHG}, s7
    v_and_b32 v{vLane}, 63, v0
    v_lshrrev_b32 v{vT}, 6, v0
    v_lshrrev_b32 v{vG}, 4, v{vLane}
    v_readfirstlane_b32 s{sW}, v{vT}
    v_and_b32 v{vL15}, 15, v{vLane}
    s_mov_b32 s{sONES}, 0x3f803f80
    s_waitcnt lgkmcnt(0)
    """)
    g(f"s_lshl_b32 s6, s{sRB}, 16")
    g(f"s_lshl_b32 s7, s{sW}, 14")
    g(f"s_add_u32 s6, s6, s7")
    g(f"s_add_u32 s{sX}, s36, s6")
    g(f"s_addc_u32 s{sX+1}, s37, 0")
    g(f"s_mov_b32 s{sX+2}, 16384")
    g(f"s_mov_b32 s{sX+3}, 0x00020000")
    g(f"s_lshl_b32 s6, s{sHG}, 7")
    g(f"s_add_u32 s{sWt}, s38, s6")
    g(f"s_addc_u32 s{sWt+1}, s39, 0")
    g(f"s_sub_u32 s{sWt+2}, 1572864, s6")
    g(f"s_mov_b32 s{sWt+3}, 0x00020000")
    srd(g, sWS, "s42", "s43", WS_BYTES)
    srd(g, sDBG, "s40", "s41", 256)
    g(f"s_mul_i32 s6, s{sHG}, {KVB}")
    g(f"s_add_u32 s6, s6, {WS_KV}")
    g(f"s_add_u32 s{sKV}, s42, s6")
    g(f"s_addc_u32 s{sKV+1}, s43, 0")
    g(f"s_mov_b32 s{sKV+2}, {KVB}")
    g(f"s_mov_b32 s{sKV+3}, 0x00020000")
    g(f"v_lshlrev_b32 v{vAo}, 10, v{vL15}")
    g(f"v_lshl_add_u32 v{vAo}, v{vG}, 4, v{vAo}")
    for ks in range(16):
        g.vmem(f"buffer_load_dwordx4 {vr(af(ks),4)}, v{vAo}, s[{sX}:{sX+3}], 0 offen offset:{ks*64}", "a")
    g(f"s_mov_b32 s{sZ}, 0")
    g(f"s_or_b32 s6, s{sRB}, s{sW}")
    g(f"s_cmp_lg_u32 s6, 0")
    g(f"s_cbranch_scc1 {name}_nozero")
    g(f"s_mov_b32 s{sZ}, 1")
    g(f"v_lshlrev_b32 v{vT}, 2, v{vLane}")
    for q in range(17):
        g(f"v_mov_b32 v{XT+q}, 0")
    for q in range(17):
        if q < 16:
            g(f"buffer_atomic_swap v{XT+q}, v{vT}, s[{sKV}:{sKV+3}], 0 offen offset:{q*256} sc0")
        else:
            g(f"s_movk_i32 s6, 4096")
            g(f"buffer_atomic_swap v{XT+q}, v{vT}, s[{sKV}:{sKV+3}], s6 offen sc0")
    g.label(f"{name}_nozero")
    g(f"s_and_b32 s6, s{sW}, 1")
    g(f"s_lshl_b32 s6, s6, 1")
    g(f"v_lshrrev_b32 v{vT}, 3, v{vLane}")
    g(f"v_mul_u32_u24 v{vWo}, 3072, v{vT}")
    g(f"v_bfe_u32 v{vT}, v{vLane}, 4, 1")
    g(f"v_or_b32 v{vT}, s6, v{vT}")
    g(f"v_bfe_u32 v{vT+1}, v{vLane}, 1, 2")
    g(f"v_xor_b32 v{vT}, v{vT}, v{vT+1}")
    g(f"v_and_b32 v{vT+1}, 1, v{vLane}")
    g(f"v_lshl_or_b32 v{vT}, v{vT}, 1, v{vT+1}")
    g(f"v_lshl_add_u32 v{vWo}, v{vT}, 4, v{vWo}")
    g(f"s_lshl_b32 s44, s{sW}, 10")
    g(f"s_mul_i32 s45, s{sW}, {8*3072}")
    def issue_items(c):
        slot = c % NS
        it = []
        for t in range(4):
            for pl in range(3):
                it.append([f"s_add_u32 m0, s44, {slot*49152 + pl*16384 + t*4096}",
                           f"s_add_u32 s7, s45, {(c*128 + t*32)*3072 + pl*1024}",
                           ("vm", f"buffer_load_dwordx4 v{vWo}, s[{sWt}:{sWt+3}], s7 offen lds", ("c", c))])
        return it
    for c in range(PD):
        for it in issue_items(c): g.emit_item(it)
    g(f"""
    v_bfe_u32 v{vT}, v{vLane}, 2, 2
    v_lshl_add_u32 v{vT+1}, v{vG}, 3, v{vT}
    v_lshlrev_b32 v{vT+1}, 7, v{vT+1}
    v_and_b32 v{vT+2}, 3, v{vLane}
    v_lshl_add_u32 v{vT+1}, v{vT+2}, 3, v{vT+1}
    v_lshrrev_b32 v{vT}, 1, v{vT}
    v_and_b32 v{vT+2}, 1, v{vG}
    v_lshl_or_b32 v{vT}, v{vT+2}, 1, v{vT}
    """)
    for u in range(4):
        g(f"v_xor_b32 v{vT+2}, {u}, v{vT}")
        g(f"v_lshl_add_u32 v{vTB+u}, v{vT+2}, 5, v{vT+1}")
    g(f"v_mov_b32 v{vS}, 0")
    g(f"v_mov_b32 v{vS+1}, 0")
    stamp(g)
    g.wait_tag("a")
    stamp(g)
    for ks in range(16):
        for k in range(4):
            a = af(ks)+k
            g(f"v_dot2_f32_bf16 v{vS}, v{a}, s{sONES}, v{vS}")
            g(f"v_dot2_f32_bf16 v{vS+1}, v{a}, v{a}, v{vS+1}")
    g("s_nop 3")
    reduce_g(g, vS, vT)
    reduce_g(g, vS+1, vT)
    ln_stats(g, vS, vS+1, vM, vM+1, vT)
    g(f"v_mov_b32 v{vS}, v{vM+1}")
    g(f"v_sub_f32 v{vM}, 0, v{vM}")
    vRSTD = vS
    def center(ks):
        r = []
        for k in range(4):
            a = af(ks)+k
            t = vT + 2*(k % 3)
            r.append([f"v_lshlrev_b32 v{t}, 16, v{a}",
                      f"v_and_b32 v{t+1}, 0xffff0000, v{a}",
                      f"v_pk_add_f32 v[{t}:{t+1}], v[{t}:{t+1}], v[{vM}:{vM+1}] op_sel_hi:[1,0]",
                      f"v_cvt_pk_bf16_f32 v{a}, v{t}, v{t+1}"])
        return r
    def reads(c, q, buf):
        r = []
        for u in range(12):
            pl, uu = u >> 2, u & 3
            off = pl*16384 + q*4096
            r.append(f"ds_read_b64_tr_b16 {vr(wf(buf,u),2)}, v{vTB+uu} offset:{off}")
            r.append(f"ds_read_b64_tr_b16 {vr(wf(buf,u)+2,2)}, v{vTB+uu} offset:{off+512}")
        return r
    def mfmas(c, q, buf):
        ks = 4*c+q
        m = []
        for u in range(12):
            c0 = "0" if ks == 0 else vr(acc(u),4)
            if u < 4:
                m.append(f"v_mfma_f32_16x16x32_bf16 {vr(acc(u),4)}, {vr(wf(buf,u),4)}, {vr(af(ks),4)}, {c0}")
            else:
                m.append(f"v_mfma_f32_16x16x32_bf16 {vr(acc(u),4)}, {vr(af(ks),4)}, {vr(wf(buf,u),4)}, {c0}")
        return m
    for it in center(0): g.emit_item(it)
    g.wait_tag(("c", 0))
    g(f"s_cmp_lg_u32 s{sZ}, 1")
    g(f"s_cbranch_scc1 {name}_noflag")
    g(f"s_mov_b64 exec, 1")
    g(f"v_mov_b32 v{vT}, s{sHG}")
    g(f"v_lshlrev_b32 v{vT}, 2, v{vT}")
    g(f"v_mov_b32 v{vT+1}, 1")
    g(f"buffer_store_dword v{vT+1}, v{vT}, s[{sDBG}:{sDBG+3}], 0 offen sc0 sc1")
    g(f"s_mov_b64 exec, -1")
    g.label(f"{name}_noflag")
    g("s_barrier")
    stamp(g)
    for r in reads(0, 0, 0): g(r)
    pend = []
    kstep = 0
    for c in range(NCH):
        for q in range(4):
            buf = kstep & 1
            ks = 4*c+q
            last = (c == NCH-1 and q == 3)
            pre = []
            if q == 3 and c+1 < NCH:
                g.wait_tag(("c", c+1))
                g("s_barrier")
                if c+PD < NCH:
                    pend = issue_items(c+PD)
                d = 49152 if (c+1) % NS else -2*49152
                pre = [f"v_add_u32 v{vTB+u}, {d}, v{vTB+u}" for u in range(4)]
            g("s_waitcnt lgkmcnt(0)")
            side = []
            if not last:
                nc, nq = (c, q+1) if q < 3 else (c+1, 0)
                rd = pre + reads(nc, nq, buf^1)
                ce = center(ks+1)
                i = j = 0
                while i < len(rd) or j < len(ce):
                    for _ in range(5):
                        if i < len(rd): side.append(rd[i]); i += 1
                    if j < len(ce): side.append(ce[j]); j += 1
            take = pend[:4]; pend = pend[4:]
            side2 = []
            for i, s in enumerate(side):
                side2.append(s)
                if i % 6 == 5 and take: side2.append(take.pop(0))
            side2 += take
            g("s_nop 1")
            g.interleave(mfmas(c, q, buf), side2)
            kstep += 1
    stamp(g)
    T = AF
    g(f"s_cmp_lg_u32 s{sW}, 0")
    g(f"s_cbranch_scc1 {name}_nopf")
    g("s_load_dwordx2 s[52:53], s[0:1], 16")
    g("s_load_dwordx2 s[54:55], s[0:1], 32")
    g("s_lshr_b32 s50, s2, 3")
    g("s_and_b32 s51, s2, 1")
    g("s_waitcnt lgkmcnt(0)")
    srd(g, 56, "s52", "s53", 524288)
    g("s_lshl_b32 s6, s50, 14")
    g("s_lshl_b32 s7, s51, 9")
    g("s_add_u32 s6, s6, s7")
    l2_prefetch(g, 56, T+80, T+81, 3, 1024, 6, 2, 8)
    srd(g, 56, "s54", "s55", 1835008)
    g(f"s_mul_i32 s6, s50, {16*3584}")
    g("s_mul_i32 s7, s51, 1792")
    g("s_add_u32 s6, s6, s7")
    l2_prefetch(g, 56, T+80, T+81, 5, 3584, 6, 8, 2)
    g.label(f"{name}_nopf")
    vFlag = T; vFo = T+1
    g(f"v_mov_b32 v{vFo}, s{sHG}")
    g(f"v_lshlrev_b32 v{vFo}, 2, v{vFo}")
    g(f"buffer_load_dword v{vFlag}, v{vFo}, s[{sDBG}:{sDBG+3}], 0 offen sc0 sc1")
    vIdx = T+2; rD = T+6
    for r in range(4):
        g(f"v_lshlrev_b32 v{vIdx+r}, 4, v{vG}")
        if r: g(f"v_add_u32 v{vIdx+r}, {4*r}, v{vIdx+r}")
    for r in range(4):
        g(f"ds_bpermute_b32 v{rD+r}, v{vIdx+r}, v{vRSTD}")
    g("s_nop 4")
    PQc = T+12
    tu = T+10
    for u in range(4):
        a = acc(u)
        for r in range(4):
            g(f"v_mul_f32 v{a+r}, v{vRSTD}, v{a+r}")
            phi(g, a+r, tu)
        g(f"v_cvt_pk_bf16_f32 v{PQc+u*2}, v{a}, v{a+1}")
        g(f"v_cvt_pk_bf16_f32 v{PQc+u*2+1}, v{a+2}, v{a+3}")
    vPQ = T+11
    g(f"v_lshlrev_b32 v{vPQ}, 4, v{vLane}")
    g(f"s_lshl_b32 s6, s{sRB}, 2")
    g(f"s_add_u32 s6, s6, s{sW}")
    g(f"s_lshl_b32 s6, s6, 14")
    g(f"s_lshl_b32 s7, s{sHG}, 11")
    g(f"s_add_u32 s6, s6, s7")
    g(f"s_add_u32 s6, s6, {WS_PQ}")
    g(f"buffer_store_dwordx4 {vr(PQc,4)}, v{vPQ}, s[{sWS}:{sWS+3}], s6 offen")
    g(f"buffer_store_dwordx4 {vr(PQc+4,4)}, v{vPQ}, s[{sWS}:{sWS+3}], s6 offen offset:1024")
    stamp(g)
    g("s_waitcnt lgkmcnt(0)")
    PK = T+20
    VV = T+28
    for u in range(4, 12):
        a = acc(u)
        for r in range(4):
            g(f"v_mul_f32 v{a+r}, v{rD+r}, v{a+r}")
            if u < 8: phi(g, a+r, tu)
        dst = PK + (u-4)*2 if u < 8 else VV + (u-8)*2
        g(f"v_cvt_pk_bf16_f32 v{dst}, v{a}, v{a+1}")
        g(f"v_cvt_pk_bf16_f32 v{dst+1}, v{a+2}, v{a+3}")
    ON = T+36
    g(f"v_mov_b32 v{ON}, s{sONES}")
    g(f"v_mov_b32 v{ON+1}, s{sONES}")
    KVr = T+40
    Zr = T+56
    g("s_nop 1")
    for hh in range(4):
        g(f"v_mfma_f32_16x16x16_bf16 {vr(KVr+hh*4,4)}, {vr(PK+hh*2,2)}, {vr(VV+hh*2,2)}, 0")
        g(f"v_mfma_f32_16x16x16_bf16 {vr(Zr+hh*4,4)}, {vr(PK+hh*2,2)}, {vr(ON,2)}, 0")
    g("s_barrier")
    vR = T+10; vRz = T+11
    g(f"s_mul_i32 s6, s{sW}, {KVB}")
    g(f"v_lshlrev_b32 v{vR}, 6, v{vL15}")
    g(f"v_lshl_add_u32 v{vR}, v{vG}, 4, v{vR}")
    g(f"v_add_u32 v{vR}, s6, v{vR}")
    g(f"v_lshlrev_b32 v{vRz}, 4, v{vG}")
    g(f"v_add_u32 v{vRz}, s6, v{vRz}")
    g("s_nop 4")
    for hh in range(4):
        g(f"ds_write_b128 v{vR}, {vr(KVr+hh*4,4)} offset:{hh*1024}")
        g(f"ds_write_b128 v{vRz}, {vr(Zr+hh*4,4)} offset:{4096+hh*64}")
    g("s_waitcnt lgkmcnt(0)")
    g("s_barrier")
    stamp(g)
    vE = T+10
    g(f"v_lshlrev_b32 v{vE}, 2, v0")
    SUM = T+12
    for e in range(5):
        for w in range(4):
            g(f"ds_read_b32 v{SUM+e*4+w}, v{vE} offset:{w*KVB+e*1024}")
    g("s_waitcnt lgkmcnt(0)")
    for e in range(5):
        for w in range(1,4):
            g(f"v_add_f32 v{SUM+e*4}, v{SUM+e*4}, v{SUM+e*4+w}")
    g(f"s_cmp_eq_u32 s{sRB}, 0")
    g(f"s_cbranch_scc1 {name}_go")
    g("s_waitcnt vmcnt(0)")
    g(f"v_readfirstlane_b32 s6, v{vFlag}")
    g("s_cmp_lg_u32 s6, 0")
    g(f"s_cbranch_scc1 {name}_go")
    g.label(f"{name}_poll")
    g("s_sleep 1")
    g(f"buffer_load_dword v{vFlag}, v{vFo}, s[{sDBG}:{sDBG+3}], 0 offen sc0 sc1")
    g("s_waitcnt vmcnt(0)")
    g(f"v_readfirstlane_b32 s6, v{vFlag}")
    g("s_cmp_eq_u32 s6, 0")
    g(f"s_cbranch_scc1 {name}_poll")
    g.label(f"{name}_go")
    for e in range(5):
        if e < 4:
            g(f"buffer_atomic_add_f32 v{SUM+e*4}, v{vE}, s[{sKV}:{sKV+3}], 0 offen offset:{e*1024}")
        else:
            g(f"s_movk_i32 s6, 4096")
            g(f"buffer_atomic_add_f32 v{SUM+e*4}, v{vE}, s[{sKV}:{sKV+3}], s6 offen")
    stamp(g); stamp_real(g, 1)
    stamp_flush(g, 0, sW, sWS)
    g.label(f"{name}_end")
    g("s_endpgm")
```

```python
from common import *
LDS = 131072 + 1024
VGPRS = 256
ACCUM = 256

def gen_k2(g, name="k2_kernel"):
    vLane, vG, vL15 = 1, 2, 3
    vT = 4
    vKVo, vPQo, vWo, vXo = 12, 13, 14, 15
    vTB = 16
    vOB = 20
    KV = 24
    PQ = 88
    XR = 152
    ACC = 160
    WF = 176
    OF = 192
    NUM = 208
    sRB, sCB, sW = 3, 4, 5
    sWO, sWS, sX = 8, 12, 16
    OBUF = 65536
    kernel_header(g, name)
    stamp_reset(); stamp(g); stamp_real(g, 0)
    g(f"""
    s_cmp_ge_u32 s2, 256
    s_cbranch_scc1 {name}_end
    s_load_dwordx2 s[36:37], s[0:1], 0
    s_load_dwordx2 s[38:39], s[0:1], 16
    s_load_dwordx2 s[42:43], s[0:1], 64
    s_and_b32 s6, s2, 7
    s_lshr_b32 s7, s6, 1
    s_lshl_b32 s{sRB}, s7, 3
    s_bfe_u32 s7, s2, 0x30003
    s_add_u32 s{sRB}, s{sRB}, s7
    s_and_b32 s7, s6, 1
    s_lshl_b32 s{sCB}, s7, 2
    s_lshr_b32 s7, s2, 6
    s_add_u32 s{sCB}, s{sCB}, s7
    v_and_b32 v{vLane}, 63, v0
    v_lshrrev_b32 v{vT}, 6, v0
    v_lshrrev_b32 v{vG}, 4, v{vLane}
    v_readfirstlane_b32 s{sW}, v{vT}
    v_and_b32 v{vL15}, 15, v{vLane}
    s_waitcnt lgkmcnt(0)
    """)
    g(f"s_lshl_b32 s6, s{sCB}, 7")
    g(f"s_add_u32 s{sWO}, s38, s6")
    g(f"s_addc_u32 s{sWO+1}, s39, 0")
    g(f"s_sub_u32 s{sWO+2}, 524288, s6")
    g(f"s_mov_b32 s{sWO+3}, 0x00020000")
    srd(g, sWS, "s42", "s43", WS_BYTES)
    g(f"s_lshl_b32 s7, s{sRB}, 16")
    g(f"s_add_u32 s6, s6, s7")
    g(f"s_add_u32 s{sX}, s36, s6")
    g(f"s_addc_u32 s{sX+1}, s37, 0")
    g(f"s_sub_u32 s{sX+2}, 2097152, s6")
    g(f"s_mov_b32 s{sX+3}, 0x00020000")
    g(f"v_lshlrev_b32 v{vKVo}, 6, v{vL15}")
    g(f"v_lshl_add_u32 v{vKVo}, v{vG}, 4, v{vKVo}")
    g(f"v_lshlrev_b32 v{vT}, 4, v{vG}")
    g(f"s_mul_i32 s6, s{sW}, {2*4352}")
    g(f"s_add_u32 s6, s6, {WS_KV}")
    for hl in range(4):
        for hh in range(2):
            g(f"s_add_u32 s7, s6, {(hl>>1)*4352 + ((hl&1)*2+hh)*1024}")
            g(f"buffer_load_dwordx4 {vr(KV+hl*16+hh*4,4)}, v{vKVo}, s[{sWS}:{sWS+3}], s7 offen")
        for hh in range(2):
            g(f"s_add_u32 s7, s6, {(hl>>1)*4352 + 4096 + ((hl&1)*2+hh)*64}")
            g(f"buffer_load_dwordx4 {vr(KV+hl*16+8+hh*4,4)}, v{vT}, s[{sWS}:{sWS+3}], s7 offen")
    g(f"v_lshlrev_b32 v{vPQo}, 4, v{vLane}")
    g(f"s_lshl_b32 s6, s{sRB}, 16")
    g(f"s_lshl_b32 s7, s{sW}, 12")
    g(f"s_add_u32 s6, s6, s7")
    g(f"s_add_u32 s6, s6, {WS_PQ}")
    for hl in range(4):
        for mt in range(4):
            g(f"s_add_u32 s7, s6, {mt*16384 + hl*1024}")
            g(f"buffer_load_dwordx4 {vr(PQ+(hl*4+mt)*4,4)}, v{vPQo}, s[{sWS}:{sWS+3}], s7 offen")
    g(f"""
    v_lshrrev_b32 v{vT}, 3, v{vLane}
    v_lshlrev_b32 v{vWo}, 10, v{vT}
    v_bfe_u32 v{vT}, v{vLane}, 1, 2
    v_bfe_u32 v{vT+1}, v{vLane}, 4, 2
    v_xor_b32 v{vT}, v{vT}, v{vT+1}
    v_and_b32 v{vT+1}, 1, v{vLane}
    v_lshl_or_b32 v{vT}, v{vT}, 1, v{vT+1}
    v_lshl_add_u32 v{vWo}, v{vT}, 4, v{vWo}
    """)
    g(f"s_lshl_b32 s6, s{sW}, 13")
    g(f"s_lshl_b32 s7, s{sW}, 10")
    for t in range(16):
        g(f"s_add_u32 m0, s7, {t*4096}")
        g(f"s_add_u32 s44, s6, {t*32768}")
        g(f"buffer_load_dwordx4 v{vWo}, s[{sWO}:{sWO+3}], s44 offen lds")
    g(f"s_lshr_b32 s6, s{sW}, 1")
    g(f"s_lshl_b32 s6, s6, 15")
    g(f"s_and_b32 s7, s{sW}, 1")
    g(f"s_lshl_b32 s7, s7, 6")
    g(f"s_add_u32 s6, s6, s7")
    g(f"v_lshlrev_b32 v{vXo}, 10, v{vL15}")
    g(f"v_lshl_add_u32 v{vXo}, v{vG}, 3, v{vXo}")
    g(f"s_add_u32 s7, s6, 16384")
    for ml in range(2):
        for nl in range(2):
            g(f"buffer_load_dwordx2 {vr(XR+(ml*2+nl)*2,2)}, v{vXo}, s[{sX}:{sX+3}], s{6+ml} offen offset:{nl*32}")
    g(f"""
    v_bfe_u32 v{vT}, v{vLane}, 2, 2
    v_lshl_add_u32 v{vT+1}, v{vG}, 2, v{vT}
    v_lshlrev_b32 v{vT+1}, 7, v{vT+1}
    v_and_b32 v{vT+2}, 3, v{vLane}
    v_lshl_add_u32 v{vT+1}, v{vT+2}, 3, v{vT+1}
    v_lshrrev_b32 v{vT}, 1, v{vT}
    v_lshl_add_u32 v{vT}, v{vG}, 1, v{vT}
    v_and_b32 v{vT}, 3, v{vT}
    """)
    for u in range(4):
        g(f"v_xor_b32 v{vT+2}, {u}, v{vT}")
        g(f"v_lshl_add_u32 v{vTB+u}, v{vT+2}, 5, v{vT+1}")
    g(f"v_lshlrev_b32 v{vOB}, 4, v{vLane}")
    stamp(g)
    g("s_waitcnt vmcnt(36)")
    stamp(g)
    for hl in range(4):
        for q in range(4):
            b = KV + hl*16 + q*4
            g(f"v_cvt_pk_bf16_f32 v{b}, v{b}, v{b+1}")
            g(f"v_cvt_pk_bf16_f32 v{b+1}, v{b+2}, v{b+3}")
    g("s_waitcnt vmcnt(20)")
    stamp(g)
    def s1_mfma(hl, mt, s):
        c = PQ + (hl*4+mt)*4; k = KV + hl*16; n = NUM + s*16
        g(f"v_mfma_f32_16x16x16_bf16 {vr(n,4)}, {vr(k,2)}, {vr(c,2)}, 0")
        g(f"v_mfma_f32_16x16x16_bf16 {vr(n+4,4)}, {vr(k+8,2)}, {vr(c,2)}, 0")
        g(f"v_mfma_f32_16x16x16_bf16 {vr(n+8,4)}, {vr(k+4,2)}, {vr(c+2,2)}, 0")
        g(f"v_mfma_f32_16x16x16_bf16 {vr(n+12,4)}, {vr(k+12,2)}, {vr(c+2,2)}, 0")
    def s1_post(hl, mt, s):
        n = NUM + s*16
        for hh in range(2):
            b = n + hh*8
            g(f"v_add_f32 v{b+4}, 0x358637bd, v{b+4}")
            g(f"v_rcp_f32 v{b+4}, v{b+4}")
            g("s_nop 0")
            for r in range(4):
                g(f"v_mul_f32 v{b+r}, v{b+r}, v{b+4}")
        g(f"v_cvt_pk_bf16_f32 v{n+4}, v{n}, v{n+1}")
        g(f"v_cvt_pk_bf16_f32 v{n+5}, v{n+2}, v{n+3}")
        g(f"v_cvt_pk_bf16_f32 v{n+6}, v{n+8}, v{n+9}")
        g(f"v_cvt_pk_bf16_f32 v{n+7}, v{n+10}, v{n+11}")
        g(f"ds_write_b128 v{vOB+1}, {vr(n+4,4)} offset:{mt*16384 + hl*1024}")
    g(f"s_lshl_b32 s6, s{sW}, 12")
    g(f"s_add_u32 s6, s6, {OBUF}")
    g(f"v_add_u32 v{vOB+1}, s6, v{vOB}")
    items = [(hl, mt) for hl in range(4) for mt in range(4)]
    g("s_nop 1")
    s1_mfma(*items[0], 0)
    for i in range(len(items)):
        if i+1 < len(items):
            s1_mfma(*items[i+1], (i+1)&1)
        else:
            g("s_nop 7")
        g("s_nop 3")
        s1_post(*items[i], i&1)
    stamp(g)
    g("s_waitcnt vmcnt(0) lgkmcnt(0)")
    g("s_barrier")
    stamp(g)
    g(f"s_cmp_lg_u32 s{sW}, 0")
    g(f"s_cbranch_scc1 {name}_nopf")
    g("s_load_dwordx2 s[52:53], s[0:1], 40")
    g("s_lshr_b32 s50, s2, 3")
    g("s_and_b32 s51, s2, 1")
    g("s_waitcnt lgkmcnt(0)")
    srd(g, 56, "s52", "s53", 1835008)
    g(f"s_mul_i32 s6, s50, {56*1024}")
    g("s_lshl_b32 s7, s51, 9")
    g("s_add_u32 s6, s6, s7")
    l2_prefetch(g, 56, vT+4, vT+5, 3, 1024, 6, 7, 8)
    g.label(f"{name}_nopf")
    g(f"s_lshr_b32 s6, s{sW}, 1")
    g(f"s_lshl_b32 s6, s6, 15")
    g(f"s_add_u32 s6, s6, {OBUF}")
    g(f"v_add_u32 v{vOB}, s6, v{vOB}")
    g(f"s_and_b32 s6, s{sW}, 1")
    g(f"s_cmp_eq_u32 s6, 0")
    g(f"s_cbranch_scc1 {name}_pw0")
    g(f"v_mov_b32 v{vTB}, v{vTB+2}")
    g(f"v_mov_b32 v{vTB+1}, v{vTB+3}")
    g.label(f"{name}_pw0")
    def s2_reads(ks, buf):
        for nl in range(2):
            g(f"ds_read_b64_tr_b16 {vr(WF+(buf*2+nl)*4,2)}, v{vTB+nl} offset:{ks*4096}")
            g(f"ds_read_b64_tr_b16 {vr(WF+(buf*2+nl)*4+2,2)}, v{vTB+nl} offset:{ks*4096+2048}")
        for ml in range(2):
            g(f"ds_read_b128 {vr(OF+(buf*2+ml)*4,4)}, v{vOB} offset:{ml*16384+ks*1024}")
    s2_reads(0, 0)
    for ks in range(16):
        buf = ks & 1
        if ks < 15:
            s2_reads(ks+1, buf^1)
            g("s_waitcnt lgkmcnt(6)")
        else:
            g("s_waitcnt lgkmcnt(0)")
        for ml in range(2):
            for nl in range(2):
                a = ACC + (ml*2+nl)*4
                c = "0" if ks == 0 else vr(a,4)
                g(f"v_mfma_f32_16x16x32_bf16 {vr(a,4)}, {vr(WF+(buf*2+nl)*4,4)}, {vr(OF+(buf*2+ml)*4,4)}, {c}")
    stamp(g)
    g("s_nop 7")
    g("s_nop 1")
    for ml in range(2):
        HC = OF + ml*4
        g(f"v_mov_b32 v{vT}, 0")
        g(f"v_mov_b32 v{vT+1}, 0")
        for nl in range(2):
            a = ACC + (ml*2+nl)*4
            x0 = XR + (ml*2+nl)*2
            for pr in range(2):
                r0, r1 = a+2*pr, a+2*pr+1
                g(f"v_cvt_pk_bf16_f32 v{vT+2}, v{r0}, v{r1}")
                g(f"v_lshlrev_b32 v{r0}, 16, v{vT+2}")
                g(f"v_and_b32 v{r1}, 0xffff0000, v{vT+2}")
                g(f"v_lshlrev_b32 v{vT+2}, 16, v{x0+pr}")
                g(f"v_and_b32 v{vT+3}, 0xffff0000, v{x0+pr}")
                g(f"v_add_f32 v{r0}, v{r0}, v{vT+2}")
                g(f"v_add_f32 v{r1}, v{r1}, v{vT+3}")
                g(f"v_cvt_pk_bf16_f32 v{HC+nl*2+pr}, v{r0}, v{r1}")
                g(f"v_dot2_f32_bf16 v{vT}, v{HC+nl*2+pr}, s45, v{vT}") if False else None
        g(f"s_mov_b32 s45, 0x3f803f80")
        for q in range(4):
            g(f"v_dot2_f32_bf16 v{vT}, v{HC+q}, s45, v{vT}")
            g(f"v_dot2_f32_bf16 v{vT+1}, v{HC+q}, v{HC+q}, v{vT+1}")
        reduce_g(g, vT, vT+2)
        reduce_g(g, vT+1, vT+2)
        g(f"s_lshr_b32 s6, s{sW}, 1")
        g(f"s_lshl_b32 s6, s6, 1")
        g(f"s_lshl_b32 s7, s{sRB}, 2")
        g(f"s_add_u32 s6, s6, s7")
        g(f"s_add_u32 s6, s6, {ml}")
        g(f"s_lshl_b32 s46, s6, 14")
        g(f"s_lshl_b32 s7, s{sCB}, 1")
        g(f"s_and_b32 s47, s{sW}, 1")
        g(f"s_add_u32 s7, s7, s47")
        g(f"s_lshl_b32 s47, s7, 10")
        g(f"s_add_u32 s46, s46, s47")
        g(f"s_add_u32 s46, s46, {WS_H}")
        g(f"v_lshlrev_b32 v{vT+3}, 4, v{vLane}")
        g(f"buffer_store_dwordx4 {vr(HC,4)}, v{vT+3}, s[{sWS}:{sWS+3}], s46 offen")
        g(f"s_lshl_b32 s6, s6, 11")
        g(f"s_lshl_b32 s7, s7, 3")
        g(f"s_add_u32 s6, s6, s7")
        g(f"s_add_u32 s6, s6, {WS_STAT}")
        g(f"v_lshlrev_b32 v{vT+3}, 7, v{vL15}")
        g("s_mov_b64 exec, 0xffff")
        g(f"buffer_store_dwordx2 {vr(vT,2)}, v{vT+3}, s[{sWS}:{sWS+3}], s6 offen")
        g("s_mov_b64 exec, -1")
    stamp(g); stamp_real(g, 1)
    stamp_flush(g, 1, sW, sWS)
    g.label(f"{name}_end")
    g("s_endpgm")
```

```python
import os
from core import *
LDS = 131072
VGPRS = 176
ACCUM = 176
NW = 8

def gen_k3(g, name="k3_kernel"):
    g.reset_vm()
    vLane, vG, vL15 = 1, 2, 3
    vT = 4
    vWo, vAo = 10, 11
    vM = 12
    vTB = 16
    ACC = 24
    WF = 56
    AF = 120
    ST = 56
    sRB, sCB, sW = 3, 4, 5
    sW1, sWS = 8, 12
    NCH, PD = 4, 1
    def af(c, q): return AF + ((c % 3)*4 + q)*4
    def wf(buf,u): return WF + (buf*8+u)*4
    def acc(u): return ACC + u*4
    kernel_header(g, name)
    stamp_reset(); stamp(g); stamp_real(g, 0)
    g(f"""
    s_cmp_ge_u32 s2, 224
    s_cbranch_scc1 {name}_end
    s_load_dwordx2 s[38:39], s[0:1], 32
    s_load_dwordx2 s[42:43], s[0:1], 64
    s_and_b32 s6, s2, 7
    s_lshr_b32 s7, s6, 1
    s_lshl_b32 s{sRB}, s7, 2
    s_bfe_u32 s7, s2, 0x20003
    s_add_u32 s{sRB}, s{sRB}, s7
    s_and_b32 s7, s6, 1
    s_mul_i32 s{sCB}, s7, 7
    s_lshr_b32 s7, s2, 5
    s_add_u32 s{sCB}, s{sCB}, s7
    v_and_b32 v{vLane}, 63, v0
    v_lshrrev_b32 v{vT}, 6, v0
    v_lshrrev_b32 v{vG}, 4, v{vLane}
    v_readfirstlane_b32 s{sW}, v{vT}
    v_and_b32 v{vL15}, 15, v{vLane}
    s_waitcnt lgkmcnt(0)
    """)
    g(f"s_lshl_b32 s6, s{sCB}, 8")
    g(f"s_add_u32 s{sW1}, s38, s6")
    g(f"s_addc_u32 s{sW1+1}, s39, 0")
    g(f"s_sub_u32 s{sW1+2}, 1835008, s6")
    g(f"s_mov_b32 s{sW1+3}, 0x00020000")
    srd(g, sWS, "s42", "s43", WS_BYTES)
    g(f"s_and_b32 s6, s{sW}, 1")
    g(f"s_lshl_b32 s6, s6, 2")
    g(f"v_mul_u32_u24 v{vWo}, 3584, v{vG}")
    g(f"v_add_u32 v{vT}, s6, v{vG}")
    g(f"v_bfe_u32 v{vT+1}, v{vLane}, 1, 3")
    g(f"v_xor_b32 v{vT}, v{vT}, v{vT+1}")
    g(f"v_and_b32 v{vT+1}, 1, v{vLane}")
    g(f"v_lshl_or_b32 v{vT}, v{vT}, 1, v{vT+1}")
    g(f"v_lshl_add_u32 v{vWo}, v{vT}, 4, v{vWo}")
    g(f"v_lshlrev_b32 v{vAo}, 4, v{vLane}")
    g(f"s_lshl_b32 s6, s{sRB}, 3")
    g(f"s_add_u32 s6, s6, s{sW}")
    g(f"s_lshl_b32 s46, s6, 14")
    g(f"s_add_u32 s46, s46, {WS_H}")
    g(f"s_lshl_b32 s47, s6, 11")
    g(f"s_add_u32 s47, s47, {WS_STAT}")
    g(f"v_lshlrev_b32 v{vT}, 7, v{vL15}")
    g(f"v_lshl_add_u32 v{vT}, v{vG}, 5, v{vT}")
    g.vmem(f"buffer_load_dwordx4 {vr(ST,4)}, v{vT}, s[{sWS}:{sWS+3}], s47 offen", "st")
    g.vmem(f"buffer_load_dwordx4 {vr(ST+4,4)}, v{vT}, s[{sWS}:{sWS+3}], s47 offen offset:16", "st")
    g(f"s_lshl_b32 s44, s{sW}, 10")
    g(f"s_mul_i32 s45, s{sW}, {4*3584}")
    def issue_items(c):
        it = []
        for t in range(4):
            tt = 4*c + t
            it.append([f"s_add_u32 m0, s44, {tt*8192}",
                       f"s_add_u32 s7, s45, {tt*32*3584}",
                       ("vm", f"buffer_load_dwordx4 v{vWo}, s[{sW1}:{sW1+3}], s7 offen lds", ("c", c))])
            it.append([f"s_add_u32 s48, s46, {(4*c+t)*1024}",
                       ("vm", f"buffer_load_dwordx4 {vr(af(c,t),4)}, v{vAo}, s[{sWS}:{sWS+3}], s48 offen", ("c", c))])
        return it
    for c in range(2):
        for it in issue_items(c): g.emit_item(it)
    g(f"""
    v_bfe_u32 v{vT}, v{vLane}, 2, 2
    v_lshl_add_u32 v{vT+1}, v{vG}, 2, v{vT}
    v_lshlrev_b32 v{vT+2}, 8, v{vT+1}
    v_and_b32 v{vT+3}, 3, v{vLane}
    v_lshl_add_u32 v{vT+2}, v{vT+3}, 3, v{vT+2}
    v_and_b32 v{vT+1}, 7, v{vT+1}
    """)
    for u in range(8):
        g(f"v_xor_b32 v{vT+3}, {u}, v{vT+1}")
        g(f"v_lshl_add_u32 v{vTB+u}, v{vT+3}, 5, v{vT+2}")
    g.wait_tag("st")
    b = ST
    g(f"v_add_f32 v{b}, v{b}, v{b+2}")
    g(f"v_add_f32 v{b+1}, v{b+1}, v{b+3}")
    g(f"v_add_f32 v{b+4}, v{b+4}, v{b+6}")
    g(f"v_add_f32 v{b+5}, v{b+5}, v{b+7}")
    g(f"v_add_f32 v{b}, v{b}, v{b+4}")
    g(f"v_add_f32 v{b+1}, v{b+1}, v{b+5}")
    reduce_g(g, b, vT)
    reduce_g(g, b+1, vT)
    ln_stats(g, b, b+1, vM, vM+1, vT)
    g(f"v_sub_f32 v{vM}, 0, v{vM}")
    stamp(g)
    def center(c, q):
        r = []
        for k in range(4):
            a = af(c,q)+k
            t = vT + 2*(k % 3)
            r.append([f"v_lshlrev_b32 v{t}, 16, v{a}",
                      f"v_and_b32 v{t+1}, 0xffff0000, v{a}",
                      f"v_pk_add_f32 v[{t}:{t+1}], v[{t}:{t+1}], v[{vM}:{vM+1}] op_sel_hi:[1,0]",
                      f"v_cvt_pk_bf16_f32 v{a}, v{t}, v{t+1}"])
        return r
    def reads(c, q, buf):
        ks = 4*c+q
        off = (ks & 7)*8192
        r = []
        for u in range(8):
            r.append(f"ds_read_b64_tr_b16 {vr(wf(buf,u),2)}, v{vTB+u} offset:{off}")
            r.append(f"ds_read_b64_tr_b16 {vr(wf(buf,u)+2,2)}, v{vTB+u} offset:{off+4096}")
        return r
    def mfmas(c, q, buf):
        m = []
        for u in range(8):
            c0 = "0" if (c == 0 and q == 0) else vr(acc(u),4)
            m.append(f"v_mfma_f32_16x16x32_bf16 {vr(acc(u),4)}, {vr(wf(buf,u),4)}, {vr(af(c,q),4)}, {c0}")
        return m
    g.wait_tag(("c", 0))
    g("s_barrier")
    stamp(g)
    for r in reads(0, 0, 0): g(r)
    for it in center(0, 0): g.emit_item(it)
    pend = issue_items(2)
    kstep = 0
    for c in range(NCH):
        for q in range(4):
            buf = kstep & 1
            last = (c == NCH-1 and q == 3)
            if q == 3 and c+1 < NCH:
                stamp(g)
                g.wait_tag(("c", c+1))
                g("s_barrier")
                stamp(g)
                if c+3 < NCH:
                    pend = pend + issue_items(c+3)
            g("s_waitcnt lgkmcnt(0)")
            side = []
            if not last:
                nc, nq = (c, q+1) if q < 3 else (c+1, 0)
                rd = reads(nc, nq, buf^1)
                if nc*4+nq == 8:
                    rd = [f"v_add_u32 v{vTB+u}, 0x10000, v{vTB+u}" for u in range(8)] + rd
                ce = center(nc, nq)
                i = j = 0
                while i < len(rd) or j < len(ce):
                    for _ in range(4):
                        if i < len(rd): side.append(rd[i]); i += 1
                    if j < len(ce): side.append(ce[j]); j += 1
            take = pend[:3]; pend = pend[3:]
            side2 = []
            for i, s in enumerate(side):
                side2.append(s)
                if i % 6 == 5 and take: side2.append(take.pop(0))
            side2 += take
            g("s_nop 1")
            g.interleave(mfmas(c, q, buf), side2)
            kstep += 1
    stamp(g)
    g("s_nop 7")
    g("s_nop 1")
    HC = WF
    g(f"v_mul_f32 v{vT}, 0xbfb8aa3b, v{vM+1}")
    Y = AF
    rs, rl = vM+1, vT
    for pl in range(4):
        for nl in range(2):
            u = pl*2+nl
            a = acc(u)
            for r in range(4):
                g(f"v_mul_f32 v{Y+r}, v{rl}, v{a+r}")
                g(f"v_exp_f32 v{Y+r}, v{Y+r}")
            for r in range(4):
                g(f"v_mul_f32 v{a+r}, v{rs}, v{a+r}")
            for r in range(4):
                g(f"v_add_f32 v{Y+r}, 1.0, v{Y+r}")
                g(f"v_rcp_f32 v{Y+r}, v{Y+r}")
            g("s_nop 0")
            for r in range(4):
                g(f"v_mul_f32 v{a+r}, v{a+r}, v{Y+r}")
            h = HC + pl*4 + nl*2
            g(f"v_cvt_pk_bf16_f32 v{h}, v{a}, v{a+1}")
            g(f"v_cvt_pk_bf16_f32 v{h+1}, v{a+2}, v{a+3}")
    g(f"v_lshlrev_b32 v{vT+2}, 4, v{vLane}")
    g(f"s_lshl_b32 s6, s{sRB}, 3")
    g(f"s_add_u32 s6, s6, s{sW}")
    g(f"s_mul_i32 s6, s6, 56")
    g(f"s_lshl_b32 s7, s{sCB}, 2")
    g(f"s_add_u32 s6, s6, s7")
    g(f"s_lshl_b32 s6, s6, 10")
    g(f"s_add_u32 s6, s6, {WS_H1}")
    for pl in range(4):
        g(f"buffer_store_dwordx4 {vr(HC+pl*4,4)}, v{vT+2}, s[{sWS}:{sWS+3}], s6 offen offset:{pl*1024}")
    stamp(g); stamp_real(g, 1)
    g(f"s_cmp_ge_u32 s{sW}, 4")
    g(f"s_cbranch_scc1 {name}_end")
    stamp_flush(g, 2, sW, sWS)
    g.label(f"{name}_end")
    g("s_endpgm")
```

```python
from core import *
LDS = 65536
VGPRS = 160
ACCUM = 160

def gen_k4(g, name="k4_kernel"):
    g.reset_vm()
    vLane, vG, vL15 = 1, 2, 3
    vT = 4
    vWo, vAo = 12, 13
    vTB = 16
    HR = 20
    ACC = 28
    WF = 44
    AR = 76
    sRB, sCB, sW = 3, 4, 5
    sW2, sWS, sOUT = 8, 12, 16
    NCH, NS, PD = 14, 4, 3
    kernel_header(g, name)
    stamp_reset(); stamp(g); stamp_real(g, 0)
    g(f"""
    s_cmp_ge_u32 s2, 256
    s_cbranch_scc1 {name}_end
    s_load_dwordx2 s[38:39], s[0:1], 40
    s_load_dwordx2 s[40:41], s[0:1], 48
    s_load_dwordx2 s[42:43], s[0:1], 64
    s_and_b32 s6, s2, 7
    s_lshr_b32 s7, s6, 1
    s_lshl_b32 s{sRB}, s7, 3
    s_bfe_u32 s7, s2, 0x30003
    s_add_u32 s{sRB}, s{sRB}, s7
    s_and_b32 s7, s6, 1
    s_lshl_b32 s{sCB}, s7, 2
    s_lshr_b32 s7, s2, 6
    s_add_u32 s{sCB}, s{sCB}, s7
    v_and_b32 v{vLane}, 63, v0
    v_lshrrev_b32 v{vT}, 6, v0
    v_lshrrev_b32 v{vG}, 4, v{vLane}
    v_readfirstlane_b32 s{sW}, v{vT}
    v_and_b32 v{vL15}, 15, v{vLane}
    s_waitcnt lgkmcnt(0)
    """)
    g(f"s_lshl_b32 s6, s{sCB}, 7")
    g(f"s_add_u32 s{sW2}, s38, s6")
    g(f"s_addc_u32 s{sW2+1}, s39, 0")
    g(f"s_sub_u32 s{sW2+2}, 1835008, s6")
    g(f"s_mov_b32 s{sW2+3}, 0x00020000")
    srd(g, sWS, "s42", "s43", WS_BYTES)
    srd(g, sOUT, "s40", "s41", 2097152)
    g(f"""
    v_lshrrev_b32 v{vT}, 3, v{vLane}
    v_lshlrev_b32 v{vWo}, 10, v{vT}
    v_bfe_u32 v{vT}, v{vLane}, 1, 2
    v_bfe_u32 v{vT+1}, v{vLane}, 4, 2
    v_xor_b32 v{vT}, v{vT}, v{vT+1}
    v_and_b32 v{vT+1}, 1, v{vLane}
    v_lshl_or_b32 v{vT}, v{vT}, 1, v{vT+1}
    v_lshl_add_u32 v{vWo}, v{vT}, 4, v{vWo}
    v_lshlrev_b32 v{vAo}, 4, v{vLane}
    """)
    g(f"s_lshl_b32 s6, s{sRB}, 2")
    g(f"s_add_u32 s6, s6, s{sW}")
    g(f"s_mul_i32 s46, s6, {56*1024}")
    g(f"s_add_u32 s46, s46, {WS_H1}")
    g(f"s_lshl_b32 s47, s6, 14")
    g(f"s_lshl_b32 s7, s{sCB}, 11")
    g(f"s_add_u32 s47, s47, s7")
    g(f"s_add_u32 s47, s47, {WS_H}")
    g(f"s_lshl_b32 s44, s{sW}, 10")
    g(f"s_lshl_b32 s45, s{sW}, 13")
    def issue_items(c):
        slot = c % NS
        it = []
        for t in range(4):
            it.append([f"s_add_u32 m0, s44, {slot*16384 + t*4096}",
                       f"s_add_u32 s7, s45, {c*131072 + t*32768}",
                       ("vm", f"buffer_load_dwordx4 v{vWo}, s[{sW2}:{sW2+3}], s7 offen lds", ("c", c))])
            it.append([f"s_add_u32 s48, s46, {(c*4+t)*1024}",
                       ("vm", f"buffer_load_dwordx4 {vr(AR+(slot*4+t)*4,4)}, v{vAo}, s[{sWS}:{sWS+3}], s48 offen", ("c", c))])
        return it
    for pl in range(2):
        g.vmem(f"buffer_load_dwordx4 {vr(HR+pl*4,4)}, v{vAo}, s[{sWS}:{sWS+3}], s47 offen offset:{pl*1024}", "hr")
    for c in range(PD):
        for it in issue_items(c): g.emit_item(it)
    g(f"""
    v_bfe_u32 v{vT}, v{vLane}, 2, 2
    v_lshl_add_u32 v{vT+1}, v{vG}, 2, v{vT}
    v_lshlrev_b32 v{vT+1}, 7, v{vT+1}
    v_and_b32 v{vT+2}, 3, v{vLane}
    v_lshl_add_u32 v{vT+1}, v{vT+2}, 3, v{vT+1}
    v_lshrrev_b32 v{vT}, 1, v{vT}
    v_lshl_add_u32 v{vT}, v{vG}, 1, v{vT}
    v_and_b32 v{vT}, 3, v{vT}
    """)
    for u in range(4):
        g(f"v_xor_b32 v{vT+2}, {u}, v{vT}")
        g(f"v_lshl_add_u32 v{vTB+u}, v{vT+2}, 5, v{vT+1}")
    stamp(g)
    def reads(c, q, buf):
        slot = c % NS
        off = slot*16384 + q*4096
        r = []
        for u in range(4):
            r.append(f"ds_read_b64_tr_b16 {vr(WF+(buf*4+u)*4,2)}, v{vTB+u} offset:{off}")
            r.append(f"ds_read_b64_tr_b16 {vr(WF+(buf*4+u)*4+2,2)}, v{vTB+u} offset:{off+2048}")
        return r
    def mfmas(c, q, buf):
        slot = c % NS
        m = []
        for u in range(4):
            c0 = "0" if (c == 0 and q == 0) else vr(ACC+u*4,4)
            m.append(f"v_mfma_f32_16x16x32_bf16 {vr(ACC+u*4,4)}, {vr(WF+(buf*4+u)*4,4)}, {vr(AR+(slot*4+q)*4,4)}, {c0}")
        return m
    g.wait_tag(("c", 0))
    g("s_barrier")
    for r in reads(0, 0, 0): g(r)
    pend = []
    kstep = 0
    for c in range(NCH):
        for q in range(4):
            buf = kstep & 1
            last = (c == NCH-1 and q == 3)
            if q == 3 and c+1 < NCH:
                g.wait_tag(("c", c+1))
                g("s_barrier")
                if c+PD < NCH:
                    pend = issue_items(c+PD)
            g("s_waitcnt lgkmcnt(0)")
            side = []
            if not last:
                nc, nq = (c, q+1) if q < 3 else (c+1, 0)
                side += reads(nc, nq, buf^1)
            take = pend[:3]; pend = pend[3:]
            side2 = []
            for i, s in enumerate(side):
                side2.append(s)
                if i % 3 == 2 and take: side2.append(take.pop(0))
            side2 += take
            g.interleave(mfmas(c, q, buf), side2)
            kstep += 1
    stamp(g)
    g("s_nop 7")
    g("s_nop 1")
    g(f"v_lshlrev_b32 v{vT}, 10, v{vL15}")
    g(f"v_lshl_add_u32 v{vT}, v{vG}, 3, v{vT}")
    g(f"s_lshl_b32 s6, s{sRB}, 2")
    g(f"s_add_u32 s6, s6, s{sW}")
    g(f"s_lshl_b32 s6, s6, 14")
    g(f"s_lshl_b32 s7, s{sCB}, 7")
    g(f"s_add_u32 s6, s6, s7")
    for pl in range(2):
        for nl in range(2):
            u = pl*2+nl
            a = ACC + u*4
            for pr in range(2):
                r0, r1 = a+2*pr, a+2*pr+1
                hx = HR + pl*4 + nl*2 + pr
                g(f"v_cvt_pk_bf16_f32 v{vT+2}, v{r0}, v{r1}")
                g(f"v_lshlrev_b32 v{r0}, 16, v{vT+2}")
                g(f"v_and_b32 v{r1}, 0xffff0000, v{vT+2}")
                g(f"v_lshlrev_b32 v{vT+2}, 16, v{hx}")
                g(f"v_and_b32 v{vT+3}, 0xffff0000, v{hx}")
                g(f"v_add_f32 v{r0}, v{r0}, v{vT+2}")
                g(f"v_add_f32 v{r1}, v{r1}, v{vT+3}")
                g(f"v_cvt_pk_bf16_f32 v{a+pr}, v{r0}, v{r1}")
            g(f"buffer_store_dwordx2 {vr(a,2)}, v{vT}, s[{sOUT}:{sOUT+3}], s6 offen offset:{pl*64+nl*32}")
    stamp(g); stamp_real(g, 1)
    stamp_flush(g, 3, sW, sWS)
    g.label(f"{name}_end")
    g("s_endpgm")
```

```python
import sys
from common import *
from core import KG
import k1

OUT = "sequential_preLN__linear_attn_block__dense_activation_silu__prompt.s"
HEADER = open("sequential_preLN__linear_attn_block__dense_activation_silu__prompt.s.ref").read().split("; Override launch")[0]

def main(stages):
    g = KG()
    launches = []
    descs = []
    if "k1" in stages:
        k1.gen_k1(g)
        launches.append(f"; @launch kernel=k1_kernel grid=(256,1,1) block=(256,1,1) lds={k1.LDS}")
        descs.append(kernel_desc("k1_kernel", k1.VGPRS, 102, k1.ACCUM))
    if "k2" in stages:
        import k2
        k2.gen_k2(g)
        launches.append(f"; @launch kernel=k2_kernel grid=(256,1,1) block=(256,1,1) lds={k2.LDS}")
        descs.append(kernel_desc("k2_kernel", k2.VGPRS, 102, k2.ACCUM))
    if "k3" in stages:
        import k3
        k3.gen_k3(g)
        launches.append(f"; @launch kernel=k3_kernel grid=(256,1,1) block=({64*k3.NW},1,1) lds={k3.LDS}")
        descs.append(kernel_desc("k3_kernel", k3.VGPRS, 102, k3.ACCUM))
    if "k4" in stages:
        import k4
        k4.gen_k4(g)
        launches.append(f"; @launch kernel=k4_kernel grid=(256,1,1) block=(256,1,1) lds={k4.LDS}")
        descs.append(kernel_desc("k4_kernel", k4.VGPRS, 102, k4.ACCUM))
    txt = HEADER + "\n".join(launches) + "\n"
    txt += '.amdgcn_target "amdgcn-amd-amdhsa--gfx950"\n.text\n'
    txt += g.text()
    txt += '.section .rodata,"a"\n.p2align 6\n' + "\n.p2align 6\n".join(descs)
    open(OUT, "w").write(txt)
    print("wrote", OUT, len(txt), "bytes")

if __name__ == "__main__":
    main(sys.argv[1:] or ["k1","k2","k3","k4"])
```

```python
import os
from core import *
LDS = 147456 + 2048
VGPRS = 256
ACCUM = 256
KVB = 4352

def gen_k1(g, name="k1_kernel"):
    g.reset_vm()
    vLane, vG, vL15 = 1, 2, 3
    vT = 4
    vAo, vWo = 10, 11
    vM = 12
    vS = 14
    vTB = 16
    ACC = 20
    WF = 68
    AF = 164
    XT = 228
    sRB, sHG, sW = 3, 4, 5
    sX, sWt, sWS, sDBG, sKV = 8, 12, 16, 20, 24
    sONES, sZ = 30, 31
    NCH, NS, PD = 4, 3, 2
    def acc(u): return ACC + u*4
    def wf(buf,u): return WF + (buf*12+u)*4
    def af(ks): return AF + ks*4
    kernel_header(g, name)
    stamp_reset(); stamp(g); stamp_real(g, 0)
    g(f"""
    s_cmp_ge_u32 s2, 256
    s_cbranch_scc1 {name}_end
    s_load_dwordx2 s[36:37], s[0:1], 0
    s_load_dwordx2 s[38:39], s[0:1], 8
    s_load_dwordx2 s[40:41], s[0:1], 56
    s_load_dwordx2 s[42:43], s[0:1], 64
    s_and_b32 s6, s2, 7
    s_lshr_b32 s7, s6, 1
    s_lshl_b32 s{sRB}, s7, 3
    s_bfe_u32 s7, s2, 0x30003
    s_add_u32 s{sRB}, s{sRB}, s7
    s_and_b32 s7, s6, 1
    s_lshl_b32 s{sHG}, s7, 2
    s_lshr_b32 s7, s2, 6
    s_add_u32 s{sHG}, s{sHG}, s7
    v_and_b32 v{vLane}, 63, v0
    v_lshrrev_b32 v{vT}, 6, v0
    v_lshrrev_b32 v{vG}, 4, v{vLane}
    v_readfirstlane_b32 s{sW}, v{vT}
    v_and_b32 v{vL15}, 15, v{vLane}
    s_mov_b32 s{sONES}, 0x3f803f80
    s_waitcnt lgkmcnt(0)
    """)
    g(f"s_lshl_b32 s6, s{sRB}, 16")
    g(f"s_lshl_b32 s7, s{sW}, 14")
    g(f"s_add_u32 s6, s6, s7")
    g(f"s_add_u32 s{sX}, s36, s6")
    g(f"s_addc_u32 s{sX+1}, s37, 0")
    g(f"s_mov_b32 s{sX+2}, 16384")
    g(f"s_mov_b32 s{sX+3}, 0x00020000")
    g(f"s_lshl_b32 s6, s{sHG}, 7")
    g(f"s_add_u32 s{sWt}, s38, s6")
    g(f"s_addc_u32 s{sWt+1}, s39, 0")
    g(f"s_sub_u32 s{sWt+2}, 1572864, s6")
    g(f"s_mov_b32 s{sWt+3}, 0x00020000")
    srd(g, sWS, "s42", "s43", WS_BYTES)
    srd(g, sDBG, "s40", "s41", 256)
    g(f"s_mul_i32 s6, s{sHG}, {KVB}")
    g(f"s_add_u32 s6, s6, {WS_KV}")
    g(f"s_add_u32 s{sKV}, s42, s6")
    g(f"s_addc_u32 s{sKV+1}, s43, 0")
    g(f"s_mov_b32 s{sKV+2}, {KVB}")
    g(f"s_mov_b32 s{sKV+3}, 0x00020000")
    g(f"v_lshlrev_b32 v{vAo}, 10, v{vL15}")
    g(f"v_lshl_add_u32 v{vAo}, v{vG}, 4, v{vAo}")
    for ks in range(16):
        g.vmem(f"buffer_load_dwordx4 {vr(af(ks),4)}, v{vAo}, s[{sX}:{sX+3}], 0 offen offset:{ks*64}", "a")
    g(f"s_mov_b32 s{sZ}, 0")
    g(f"s_or_b32 s6, s{sRB}, s{sW}")
    g(f"s_cmp_lg_u32 s6, 0")
    g(f"s_cbranch_scc1 {name}_nozero")
    g(f"s_mov_b32 s{sZ}, 1")
    g(f"v_lshlrev_b32 v{vT}, 2, v{vLane}")
    for q in range(17):
        g(f"v_mov_b32 v{XT+q}, 0")
    for q in range(17):
        if q < 16:
            g(f"buffer_atomic_swap v{XT+q}, v{vT}, s[{sKV}:{sKV+3}], 0 offen offset:{q*256} sc0")
        else:
            g(f"s_movk_i32 s6, 4096")
            g(f"buffer_atomic_swap v{XT+q}, v{vT}, s[{sKV}:{sKV+3}], s6 offen sc0")
    g.label(f"{name}_nozero")
    g(f"s_and_b32 s6, s{sW}, 1")
    g(f"s_lshl_b32 s6, s6, 1")
    g(f"v_lshrrev_b32 v{vT}, 3, v{vLane}")
    g(f"v_mul_u32_u24 v{vWo}, 3072, v{vT}")
    g(f"v_bfe_u32 v{vT}, v{vLane}, 4, 1")
    g(f"v_or_b32 v{vT}, s6, v{vT}")
    g(f"v_bfe_u32 v{vT+1}, v{vLane}, 1, 2")
    g(f"v_xor_b32 v{vT}, v{vT}, v{vT+1}")
    g(f"v_and_b32 v{vT+1}, 1, v{vLane}")
    g(f"v_lshl_or_b32 v{vT}, v{vT}, 1, v{vT+1}")
    g(f"v_lshl_add_u32 v{vWo}, v{vT}, 4, v{vWo}")
    g(f"s_lshl_b32 s44, s{sW}, 10")
    g(f"s_mul_i32 s45, s{sW}, {8*3072}")
    def issue_items(c):
        slot = c % NS
        it = []
        for t in range(4):
            for pl in range(3):
                it.append([f"s_add_u32 m0, s44, {slot*49152 + pl*16384 + t*4096}",
                           f"s_add_u32 s7, s45, {(c*128 + t*32)*3072 + pl*1024}",
                           ("vm", f"buffer_load_dwordx4 v{vWo}, s[{sWt}:{sWt+3}], s7 offen lds", ("c", c))])
        return it
    for c in range(PD):
        for it in issue_items(c): g.emit_item(it)
    g(f"""
    v_bfe_u32 v{vT}, v{vLane}, 2, 2
    v_lshl_add_u32 v{vT+1}, v{vG}, 3, v{vT}
    v_lshlrev_b32 v{vT+1}, 7, v{vT+1}
    v_and_b32 v{vT+2}, 3, v{vLane}
    v_lshl_add_u32 v{vT+1}, v{vT+2}, 3, v{vT+1}
    v_lshrrev_b32 v{vT}, 1, v{vT}
    v_and_b32 v{vT+2}, 1, v{vG}
    v_lshl_or_b32 v{vT}, v{vT+2}, 1, v{vT}
    """)
    for u in range(4):
        g(f"v_xor_b32 v{vT+2}, {u}, v{vT}")
        g(f"v_lshl_add_u32 v{vTB+u}, v{vT+2}, 5, v{vT+1}")
    g(f"v_mov_b32 v{vS}, 0")
    g(f"v_mov_b32 v{vS+1}, 0")
    stamp(g)
    g.wait_tag("a")
    stamp(g)
    for ks in range(16):
        for k in range(4):
            a = af(ks)+k
            g(f"v_dot2_f32_bf16 v{vS}, v{a}, s{sONES}, v{vS}")
            g(f"v_dot2_f32_bf16 v{vS+1}, v{a}, v{a}, v{vS+1}")
    g("s_nop 3")
    reduce_g(g, vS, vT)
    reduce_g(g, vS+1, vT)
    ln_stats(g, vS, vS+1, vM, vM+1, vT)
    g(f"v_mov_b32 v{vS}, v{vM+1}")
    g(f"v_sub_f32 v{vM}, 0, v{vM}")
    vRSTD = vS
    def center(ks):
        r = []
        for k in range(4):
            a = af(ks)+k
            t = vT + 2*(k % 3)
            r.append([f"v_lshlrev_b32 v{t}, 16, v{a}",
                      f"v_and_b32 v{t+1}, 0xffff0000, v{a}",
                      f"v_pk_add_f32 v[{t}:{t+1}], v[{t}:{t+1}], v[{vM}:{vM+1}] op_sel_hi:[1,0]",
                      f"v_cvt_pk_bf16_f32 v{a}, v{t}, v{t+1}"])
        return r
    def reads(c, q, buf):
        r = []
        for u in range(12):
            pl, uu = u >> 2, u & 3
            off = pl*16384 + q*4096
            r.append(f"ds_read_b64_tr_b16 {vr(wf(buf,u),2)}, v{vTB+uu} offset:{off}")
            r.append(f"ds_read_b64_tr_b16 {vr(wf(buf,u)+2,2)}, v{vTB+uu} offset:{off+512}")
        return r
    def mfmas(c, q, buf):
        ks = 4*c+q
        m = []
        for u in range(12):
            c0 = "0" if ks == 0 else vr(acc(u),4)
            if u < 4:
                m.append(f"v_mfma_f32_16x16x32_bf16 {vr(acc(u),4)}, {vr(wf(buf,u),4)}, {vr(af(ks),4)}, {c0}")
            else:
                m.append(f"v_mfma_f32_16x16x32_bf16 {vr(acc(u),4)}, {vr(af(ks),4)}, {vr(wf(buf,u),4)}, {c0}")
        return m
    for it in center(0): g.emit_item(it)
    g.wait_tag(("c", 0))
    g(f"s_cmp_lg_u32 s{sZ}, 1")
    g(f"s_cbranch_scc1 {name}_noflag")
    g(f"s_mov_b64 exec, 1")
    g(f"v_mov_b32 v{vT}, s{sHG}")
    g(f"v_lshlrev_b32 v{vT}, 2, v{vT}")
    g(f"v_mov_b32 v{vT+1}, 1")
    g(f"buffer_store_dword v{vT+1}, v{vT}, s[{sDBG}:{sDBG+3}], 0 offen sc0 sc1")
    g(f"s_mov_b64 exec, -1")
    g.label(f"{name}_noflag")
    g("s_barrier")
    stamp(g)
    for r in reads(0, 0, 0): g(r)
    pend = []
    kstep = 0
    for c in range(NCH):
        for q in range(4):
            buf = kstep & 1
            ks = 4*c+q
            last = (c == NCH-1 and q == 3)
            pre = []
            if q == 3 and c+1 < NCH:
                g.wait_tag(("c", c+1))
                g("s_barrier")
                if c+PD < NCH:
                    pend = issue_items(c+PD)
                d = 49152 if (c+1) % NS else -2*49152
                pre = [f"v_add_u32 v{vTB+u}, {d}, v{vTB+u}" for u in range(4)]
            g("s_waitcnt lgkmcnt(0)")
            side = []
            if not last:
                nc, nq = (c, q+1) if q < 3 else (c+1, 0)
                rd = pre + reads(nc, nq, buf^1)
                ce = center(ks+1)
                i = j = 0
                while i < len(rd) or j < len(ce):
                    for _ in range(5):
                        if i < len(rd): side.append(rd[i]); i += 1
                    if j < len(ce): side.append(ce[j]); j += 1
            take = pend[:4]; pend = pend[4:]
            side2 = []
            for i, s in enumerate(side):
                side2.append(s)
                if i % 6 == 5 and take: side2.append(take.pop(0))
            side2 += take
            g("s_nop 1")
            g.interleave(mfmas(c, q, buf), side2)
            kstep += 1
    stamp(g)
    T = AF
    g(f"s_cmp_lg_u32 s{sW}, 0")
    g(f"s_cbranch_scc1 {name}_nopf")
    g("s_load_dwordx2 s[52:53], s[0:1], 16")
    g("s_load_dwordx2 s[54:55], s[0:1], 32")
    g("s_lshr_b32 s50, s2, 3")
    g("s_and_b32 s51, s2, 1")
    g("s_waitcnt lgkmcnt(0)")
    srd(g, 56, "s52", "s53", 524288)
    g("s_lshl_b32 s6, s50, 14")
    l2_prefetch(g, 56, T+80, T+81, 4, 1024, 6, 4, 4)
    srd(g, 56, "s54", "s55", 1835008)
    g(f"s_mul_i32 s6, s50, {16*3584}")
    l2_prefetch(g, 56, T+80, T+81, 6, 3584, 6, 16, 1)
    g.label(f"{name}_nopf")
    vFlag = T; vFo = T+1
    g(f"v_mov_b32 v{vFo}, s{sHG}")
    g(f"v_lshlrev_b32 v{vFo}, 2, v{vFo}")
    g(f"buffer_load_dword v{vFlag}, v{vFo}, s[{sDBG}:{sDBG+3}], 0 offen sc0 sc1")
    vIdx = T+2; rD = T+6
    for r in range(4):
        g(f"v_lshlrev_b32 v{vIdx+r}, 4, v{vG}")
        if r: g(f"v_add_u32 v{vIdx+r}, {4*r}, v{vIdx+r}")
    for r in range(4):
        g(f"ds_bpermute_b32 v{rD+r}, v{vIdx+r}, v{vRSTD}")
    g("s_nop 4")
    PQc = T+12
    tu = T+10
    for u in range(4):
        a = acc(u)
        for r in range(4):
            g(f"v_mul_f32 v{a+r}, v{vRSTD}, v{a+r}")
            phi(g, a+r, tu)
        g(f"v_cvt_pk_bf16_f32 v{PQc+u*2}, v{a}, v{a+1}")
        g(f"v_cvt_pk_bf16_f32 v{PQc+u*2+1}, v{a+2}, v{a+3}")
    vPQ = T+11
    g(f"v_lshlrev_b32 v{vPQ}, 4, v{vLane}")
    g(f"s_lshl_b32 s6, s{sRB}, 2")
    g(f"s_add_u32 s6, s6, s{sW}")
    g(f"s_lshl_b32 s6, s6, 14")
    g(f"s_lshl_b32 s7, s{sHG}, 11")
    g(f"s_add_u32 s6, s6, s7")
    g(f"s_add_u32 s6, s6, {WS_PQ}")
    g(f"buffer_store_dwordx4 {vr(PQc,4)}, v{vPQ}, s[{sWS}:{sWS+3}], s6 offen")
    g(f"buffer_store_dwordx4 {vr(PQc+4,4)}, v{vPQ}, s[{sWS}:{sWS+3}], s6 offen offset:1024")
    stamp(g)
    g("s_waitcnt lgkmcnt(0)")
    PK = T+20
    VV = T+28
    for u in range(4, 12):
        a = acc(u)
        for r in range(4):
            g(f"v_mul_f32 v{a+r}, v{rD+r}, v{a+r}")
            if u < 8: phi(g, a+r, tu)
        dst = PK + (u-4)*2 if u < 8 else VV + (u-8)*2
        g(f"v_cvt_pk_bf16_f32 v{dst}, v{a}, v{a+1}")
        g(f"v_cvt_pk_bf16_f32 v{dst+1}, v{a+2}, v{a+3}")
    ON = T+36
    g(f"v_mov_b32 v{ON}, s{sONES}")
    g(f"v_mov_b32 v{ON+1}, s{sONES}")
    KVr = T+40
    Zr = T+56
    g("s_nop 1")
    for hh in range(4):
        g(f"v_mfma_f32_16x16x16_bf16 {vr(KVr+hh*4,4)}, {vr(PK+hh*2,2)}, {vr(VV+hh*2,2)}, 0")
        g(f"v_mfma_f32_16x16x16_bf16 {vr(Zr+hh*4,4)}, {vr(PK+hh*2,2)}, {vr(ON,2)}, 0")
    g("s_barrier")
    vR = T+10; vRz = T+11
    g(f"s_mul_i32 s6, s{sW}, {KVB}")
    g(f"v_lshlrev_b32 v{vR}, 6, v{vL15}")
    g(f"v_lshl_add_u32 v{vR}, v{vG}, 4, v{vR}")
    g(f"v_add_u32 v{vR}, s6, v{vR}")
    g(f"v_lshlrev_b32 v{vRz}, 4, v{vG}")
    g(f"v_add_u32 v{vRz}, s6, v{vRz}")
    g("s_nop 4")
    for hh in range(4):
        g(f"ds_write_b128 v{vR}, {vr(KVr+hh*4,4)} offset:{hh*1024}")
        g(f"ds_write_b128 v{vRz}, {vr(Zr+hh*4,4)} offset:{4096+hh*64}")
    g("s_waitcnt lgkmcnt(0)")
    g("s_barrier")
    stamp(g)
    vE = T+10
    g(f"v_lshlrev_b32 v{vE}, 2, v0")
    SUM = T+12
    for e in range(5):
        for w in range(4):
            g(f"ds_read_b32 v{SUM+e*4+w}, v{vE} offset:{w*KVB+e*1024}")
    g("s_waitcnt lgkmcnt(0)")
    for e in range(5):
        for w in range(1,4):
            g(f"v_add_f32 v{SUM+e*4}, v{SUM+e*4}, v{SUM+e*4+w}")
    g(f"s_cmp_eq_u32 s{sRB}, 0")
    g(f"s_cbranch_scc1 {name}_go")
    g("s_waitcnt vmcnt(0)")
    g(f"v_readfirstlane_b32 s6, v{vFlag}")
    g("s_cmp_lg_u32 s6, 0")
    g(f"s_cbranch_scc1 {name}_go")
    g.label(f"{name}_poll")
    g("s_sleep 1")
    g(f"buffer_load_dword v{vFlag}, v{vFo}, s[{sDBG}:{sDBG+3}], 0 offen sc0 sc1")
    g("s_waitcnt vmcnt(0)")
    g(f"v_readfirstlane_b32 s6, v{vFlag}")
    g("s_cmp_eq_u32 s6, 0")
    g(f"s_cbranch_scc1 {name}_poll")
    g.label(f"{name}_go")
    for e in range(5):
        if e < 4:
            g(f"buffer_atomic_add_f32 v{SUM+e*4}, v{vE}, s[{sKV}:{sKV+3}], 0 offen offset:{e*1024}")
        else:
            g(f"s_movk_i32 s6, 4096")
            g(f"buffer_atomic_add_f32 v{SUM+e*4}, v{vE}, s[{sKV}:{sKV+3}], s6 offen")
    stamp(g); stamp_real(g, 1)
    stamp_flush(g, 0, sW, sWS)
    g.label(f"{name}_end")
    g("s_endpgm")
```

```python
from common import *
LDS = 131072 + 1024
VGPRS = 256
ACCUM = 256

def gen_k2(g, name="k2_kernel"):
    vLane, vG, vL15 = 1, 2, 3
    vT = 4
    vKVo, vPQo, vWo, vXo = 12, 13, 14, 15
    vTB = 16
    vOB = 20
    KV = 24
    PQ = 88
    XR = 152
    ACC = 160
    WF = 176
    OF = 192
    NUM = 208
    sRB, sCB, sW = 3, 4, 5
    sWO, sWS, sX = 8, 12, 16
    OBUF = 65536
    kernel_header(g, name)
    stamp_reset(); stamp(g); stamp_real(g, 0)
    g(f"""
    s_cmp_ge_u32 s2, 256
    s_cbranch_scc1 {name}_end
    s_load_dwordx2 s[36:37], s[0:1], 0
    s_load_dwordx2 s[38:39], s[0:1], 16
    s_load_dwordx2 s[42:43], s[0:1], 64
    s_and_b32 s6, s2, 7
    s_lshl_b32 s{sRB}, s6, 2
    s_bfe_u32 s7, s2, 0x20003
    s_add_u32 s{sRB}, s{sRB}, s7
    s_lshr_b32 s{sCB}, s2, 5
    v_and_b32 v{vLane}, 63, v0
    v_lshrrev_b32 v{vT}, 6, v0
    v_lshrrev_b32 v{vG}, 4, v{vLane}
    v_readfirstlane_b32 s{sW}, v{vT}
    v_and_b32 v{vL15}, 15, v{vLane}
    s_waitcnt lgkmcnt(0)
    """)
    g(f"s_lshl_b32 s6, s{sCB}, 7")
    g(f"s_add_u32 s{sWO}, s38, s6")
    g(f"s_addc_u32 s{sWO+1}, s39, 0")
    g(f"s_sub_u32 s{sWO+2}, 524288, s6")
    g(f"s_mov_b32 s{sWO+3}, 0x00020000")
    srd(g, sWS, "s42", "s43", WS_BYTES)
    g(f"s_lshl_b32 s7, s{sRB}, 16")
    g(f"s_add_u32 s6, s6, s7")
    g(f"s_add_u32 s{sX}, s36, s6")
    g(f"s_addc_u32 s{sX+1}, s37, 0")
    g(f"s_sub_u32 s{sX+2}, 2097152, s6")
    g(f"s_mov_b32 s{sX+3}, 0x00020000")
    g(f"v_lshlrev_b32 v{vKVo}, 6, v{vL15}")
    g(f"v_lshl_add_u32 v{vKVo}, v{vG}, 4, v{vKVo}")
    g(f"v_lshlrev_b32 v{vT}, 4, v{vG}")
    g(f"s_mul_i32 s6, s{sW}, {2*4352}")
    g(f"s_add_u32 s6, s6, {WS_KV}")
    for hl in range(4):
        for hh in range(2):
            g(f"s_add_u32 s7, s6, {(hl>>1)*4352 + ((hl&1)*2+hh)*1024}")
            g(f"buffer_load_dwordx4 {vr(KV+hl*16+hh*4,4)}, v{vKVo}, s[{sWS}:{sWS+3}], s7 offen")
        for hh in range(2):
            g(f"s_add_u32 s7, s6, {(hl>>1)*4352 + 4096 + ((hl&1)*2+hh)*64}")
            g(f"buffer_load_dwordx4 {vr(KV+hl*16+8+hh*4,4)}, v{vT}, s[{sWS}:{sWS+3}], s7 offen")
    g(f"v_lshlrev_b32 v{vPQo}, 4, v{vLane}")
    g(f"s_lshl_b32 s6, s{sRB}, 16")
    g(f"s_lshl_b32 s7, s{sW}, 12")
    g(f"s_add_u32 s6, s6, s7")
    g(f"s_add_u32 s6, s6, {WS_PQ}")
    for hl in range(4):
        for mt in range(4):
            g(f"s_add_u32 s7, s6, {mt*16384 + hl*1024}")
            g(f"buffer_load_dwordx4 {vr(PQ+(hl*4+mt)*4,4)}, v{vPQo}, s[{sWS}:{sWS+3}], s7 offen")
    g(f"""
    v_lshrrev_b32 v{vT}, 3, v{vLane}
    v_lshlrev_b32 v{vWo}, 10, v{vT}
    v_bfe_u32 v{vT}, v{vLane}, 1, 2
    v_bfe_u32 v{vT+1}, v{vLane}, 4, 2
    v_xor_b32 v{vT}, v{vT}, v{vT+1}
    v_and_b32 v{vT+1}, 1, v{vLane}
    v_lshl_or_b32 v{vT}, v{vT}, 1, v{vT+1}
    v_lshl_add_u32 v{vWo}, v{vT}, 4, v{vWo}
    """)
    g(f"s_lshl_b32 s6, s{sW}, 13")
    g(f"s_lshl_b32 s7, s{sW}, 10")
    for t in range(16):
        g(f"s_add_u32 m0, s7, {t*4096}")
        g(f"s_add_u32 s44, s6, {t*32768}")
        g(f"buffer_load_dwordx4 v{vWo}, s[{sWO}:{sWO+3}], s44 offen lds")
    g(f"s_lshr_b32 s6, s{sW}, 1")
    g(f"s_lshl_b32 s6, s6, 15")
    g(f"s_and_b32 s7, s{sW}, 1")
    g(f"s_lshl_b32 s7, s7, 6")
    g(f"s_add_u32 s6, s6, s7")
    g(f"v_lshlrev_b32 v{vXo}, 10, v{vL15}")
    g(f"v_lshl_add_u32 v{vXo}, v{vG}, 3, v{vXo}")
    g(f"s_add_u32 s7, s6, 16384")
    for ml in range(2):
        for nl in range(2):
            g(f"buffer_load_dwordx2 {vr(XR+(ml*2+nl)*2,2)}, v{vXo}, s[{sX}:{sX+3}], s{6+ml} offen offset:{nl*32}")
    g(f"""
    v_bfe_u32 v{vT}, v{vLane}, 2, 2
    v_lshl_add_u32 v{vT+1}, v{vG}, 2, v{vT}
    v_lshlrev_b32 v{vT+1}, 7, v{vT+1}
    v_and_b32 v{vT+2}, 3, v{vLane}
    v_lshl_add_u32 v{vT+1}, v{vT+2}, 3, v{vT+1}
    v_lshrrev_b32 v{vT}, 1, v{vT}
    v_lshl_add_u32 v{vT}, v{vG}, 1, v{vT}
    v_and_b32 v{vT}, 3, v{vT}
    """)
    for u in range(4):
        g(f"v_xor_b32 v{vT+2}, {u}, v{vT}")
        g(f"v_lshl_add_u32 v{vTB+u}, v{vT+2}, 5, v{vT+1}")
    g(f"v_lshlrev_b32 v{vOB}, 4, v{vLane}")
    stamp(g)
    g("s_waitcnt vmcnt(36)")
    stamp(g)
    for hl in range(4):
        for q in range(4):
            b = KV + hl*16 + q*4
            g(f"v_cvt_pk_bf16_f32 v{b}, v{b}, v{b+1}")
            g(f"v_cvt_pk_bf16_f32 v{b+1}, v{b+2}, v{b+3}")
    g("s_waitcnt vmcnt(20)")
    stamp(g)
    def s1_mfma(hl, mt, s):
        c = PQ + (hl*4+mt)*4; k = KV + hl*16; n = NUM + s*16
        g(f"v_mfma_f32_16x16x16_bf16 {vr(n,4)}, {vr(k,2)}, {vr(c,2)}, 0")
        g(f"v_mfma_f32_16x16x16_bf16 {vr(n+4,4)}, {vr(k+8,2)}, {vr(c,2)}, 0")
        g(f"v_mfma_f32_16x16x16_bf16 {vr(n+8,4)}, {vr(k+4,2)}, {vr(c+2,2)}, 0")
        g(f"v_mfma_f32_16x16x16_bf16 {vr(n+12,4)}, {vr(k+12,2)}, {vr(c+2,2)}, 0")
    def s1_post(hl, mt, s):
        n = NUM + s*16
        for hh in range(2):
            b = n + hh*8
            g(f"v_add_f32 v{b+4}, 0x358637bd, v{b+4}")
            g(f"v_rcp_f32 v{b+4}, v{b+4}")
            g("s_nop 0")
            for r in range(4):
                g(f"v_mul_f32 v{b+r}, v{b+r}, v{b+4}")
        g(f"v_cvt_pk_bf16_f32 v{n+4}, v{n}, v{n+1}")
        g(f"v_cvt_pk_bf16_f32 v{n+5}, v{n+2}, v{n+3}")
        g(f"v_cvt_pk_bf16_f32 v{n+6}, v{n+8}, v{n+9}")
        g(f"v_cvt_pk_bf16_f32 v{n+7}, v{n+10}, v{n+11}")
        g(f"ds_write_b128 v{vOB+1}, {vr(n+4,4)} offset:{mt*16384 + hl*1024}")
    g(f"s_lshl_b32 s6, s{sW}, 12")
    g(f"s_add_u32 s6, s6, {OBUF}")
    g(f"v_add_u32 v{vOB+1}, s6, v{vOB}")
    items = [(hl, mt) for hl in range(4) for mt in range(4)]
    g("s_nop 1")
    s1_mfma(*items[0], 0)
    for i in range(len(items)):
        if i+1 < len(items):
            s1_mfma(*items[i+1], (i+1)&1)
        else:
            g("s_nop 7")
        g("s_nop 3")
        s1_post(*items[i], i&1)
    stamp(g)
    g("s_waitcnt vmcnt(0) lgkmcnt(0)")
    g("s_barrier")
    stamp(g)
    g(f"s_cmp_lg_u32 s{sW}, 0")
    g(f"s_cbranch_scc1 {name}_nopf")
    g("s_load_dwordx2 s[52:53], s[0:1], 40")
    g("s_lshr_b32 s50, s2, 3")
    g("s_and_b32 s51, s2, 1")
    g("s_waitcnt lgkmcnt(0)")
    srd(g, 56, "s52", "s53", 1835008)
    g(f"s_mul_i32 s6, s50, {56*1024}")
    l2_prefetch(g, 56, vT+4, vT+5, 4, 1024, 6, 14, 4)
    g.label(f"{name}_nopf")
    g(f"s_lshr_b32 s6, s{sW}, 1")
    g(f"s_lshl_b32 s6, s6, 15")
    g(f"s_add_u32 s6, s6, {OBUF}")
    g(f"v_add_u32 v{vOB}, s6, v{vOB}")
    g(f"s_and_b32 s6, s{sW}, 1")
    g(f"s_cmp_eq_u32 s6, 0")
    g(f"s_cbranch_scc1 {name}_pw0")
    g(f"v_mov_b32 v{vTB}, v{vTB+2}")
    g(f"v_mov_b32 v{vTB+1}, v{vTB+3}")
    g.label(f"{name}_pw0")
    def s2_reads(ks, buf):
        for nl in range(2):
            g(f"ds_read_b64_tr_b16 {vr(WF+(buf*2+nl)*4,2)}, v{vTB+nl} offset:{ks*4096}")
            g(f"ds_read_b64_tr_b16 {vr(WF+(buf*2+nl)*4+2,2)}, v{vTB+nl} offset:{ks*4096+2048}")
        for ml in range(2):
            g(f"ds_read_b128 {vr(OF+(buf*2+ml)*4,4)}, v{vOB} offset:{ml*16384+ks*1024}")
    s2_reads(0, 0)
    for ks in range(16):
        buf = ks & 1
        if ks < 15:
            s2_reads(ks+1, buf^1)
            g("s_waitcnt lgkmcnt(6)")
        else:
            g("s_waitcnt lgkmcnt(0)")
        for ml in range(2):
            for nl in range(2):
                a = ACC + (ml*2+nl)*4
                c = "0" if ks == 0 else vr(a,4)
                g(f"v_mfma_f32_16x16x32_bf16 {vr(a,4)}, {vr(WF+(buf*2+nl)*4,4)}, {vr(OF+(buf*2+ml)*4,4)}, {c}")
    stamp(g)
    g("s_nop 7")
    g("s_nop 1")
    for ml in range(2):
        HC = OF + ml*4
        g(f"v_mov_b32 v{vT}, 0")
        g(f"v_mov_b32 v{vT+1}, 0")
        for nl in range(2):
            a = ACC + (ml*2+nl)*4
            x0 = XR + (ml*2+nl)*2
            for pr in range(2):
                r0, r1 = a+2*pr, a+2*pr+1
                g(f"v_cvt_pk_bf16_f32 v{vT+2}, v{r0}, v{r1}")
                g(f"v_lshlrev_b32 v{r0}, 16, v{vT+2}")
                g(f"v_and_b32 v{r1}, 0xffff0000, v{vT+2}")
                g(f"v_lshlrev_b32 v{vT+2}, 16, v{x0+pr}")
                g(f"v_and_b32 v{vT+3}, 0xffff0000, v{x0+pr}")
                g(f"v_add_f32 v{r0}, v{r0}, v{vT+2}")
                g(f"v_add_f32 v{r1}, v{r1}, v{vT+3}")
                g(f"v_cvt_pk_bf16_f32 v{HC+nl*2+pr}, v{r0}, v{r1}")
                g(f"v_dot2_f32_bf16 v{vT}, v{HC+nl*2+pr}, s45, v{vT}") if False else None
        g(f"s_mov_b32 s45, 0x3f803f80")
        for q in range(4):
            g(f"v_dot2_f32_bf16 v{vT}, v{HC+q}, s45, v{vT}")
            g(f"v_dot2_f32_bf16 v{vT+1}, v{HC+q}, v{HC+q}, v{vT+1}")
        reduce_g(g, vT, vT+2)
        reduce_g(g, vT+1, vT+2)
        g(f"s_lshr_b32 s6, s{sW}, 1")
        g(f"s_lshl_b32 s6, s6, 1")
        g(f"s_lshl_b32 s7, s{sRB}, 2")
        g(f"s_add_u32 s6, s6, s7")
        g(f"s_add_u32 s6, s6, {ml}")
        g(f"s_lshl_b32 s46, s6, 14")
        g(f"s_lshl_b32 s7, s{sCB}, 1")
        g(f"s_and_b32 s47, s{sW}, 1")
        g(f"s_add_u32 s7, s7, s47")
        g(f"s_lshl_b32 s47, s7, 10")
        g(f"s_add_u32 s46, s46, s47")
        g(f"s_add_u32 s46, s46, {WS_H}")
        g(f"v_lshlrev_b32 v{vT+3}, 4, v{vLane}")
        g(f"buffer_store_dwordx4 {vr(HC,4)}, v{vT+3}, s[{sWS}:{sWS+3}], s46 offen")
        g(f"s_lshl_b32 s6, s6, 11")
        g(f"s_lshl_b32 s7, s7, 3")
        g(f"s_add_u32 s6, s6, s7")
        g(f"s_add_u32 s6, s6, {WS_STAT}")
        g(f"v_lshlrev_b32 v{vT+3}, 7, v{vL15}")
        g("s_mov_b64 exec, 0xffff")
        g(f"buffer_store_dwordx2 {vr(vT,2)}, v{vT+3}, s[{sWS}:{sWS+3}], s6 offen")
        g("s_mov_b64 exec, -1")
    stamp(g); stamp_real(g, 1)
    stamp_flush(g, 1, sW, sWS)
    g.label(f"{name}_end")
    g("s_endpgm")
```

```python
import os
from core import *
LDS = 131072
VGPRS = 176
ACCUM = 176
NW = 8

def gen_k3(g, name="k3_kernel"):
    g.reset_vm()
    vLane, vG, vL15 = 1, 2, 3
    vT = 4
    vWo, vAo = 10, 11
    vM = 12
    vTB = 16
    ACC = 24
    WF = 56
    AF = 120
    ST = 56
    sRB, sCB, sW = 3, 4, 5
    sW1, sWS = 8, 12
    NCH, PD = 4, 1
    def af(c, q): return AF + ((c % 3)*4 + q)*4
    def wf(buf,u): return WF + (buf*8+u)*4
    def acc(u): return ACC + u*4
    kernel_header(g, name)
    stamp_reset(); stamp(g); stamp_real(g, 0)
    g(f"""
    s_cmp_ge_u32 s2, 224
    s_cbranch_scc1 {name}_end
    s_load_dwordx2 s[38:39], s[0:1], 32
    s_load_dwordx2 s[42:43], s[0:1], 64
    s_and_b32 s6, s2, 7
    s_lshl_b32 s{sRB}, s6, 1
    s_bfe_u32 s7, s2, 0x10003
    s_add_u32 s{sRB}, s{sRB}, s7
    s_lshr_b32 s{sCB}, s2, 4
    v_and_b32 v{vLane}, 63, v0
    v_lshrrev_b32 v{vT}, 6, v0
    v_lshrrev_b32 v{vG}, 4, v{vLane}
    v_readfirstlane_b32 s{sW}, v{vT}
    v_and_b32 v{vL15}, 15, v{vLane}
    s_waitcnt lgkmcnt(0)
    """)
    g(f"s_lshl_b32 s6, s{sCB}, 8")
    g(f"s_add_u32 s{sW1}, s38, s6")
    g(f"s_addc_u32 s{sW1+1}, s39, 0")
    g(f"s_sub_u32 s{sW1+2}, 1835008, s6")
    g(f"s_mov_b32 s{sW1+3}, 0x00020000")
    srd(g, sWS, "s42", "s43", WS_BYTES)
    g(f"s_and_b32 s6, s{sW}, 1")
    g(f"s_lshl_b32 s6, s6, 2")
    g(f"v_mul_u32_u24 v{vWo}, 3584, v{vG}")
    g(f"v_add_u32 v{vT}, s6, v{vG}")
    g(f"v_bfe_u32 v{vT+1}, v{vLane}, 1, 3")
    g(f"v_xor_b32 v{vT}, v{vT}, v{vT+1}")
    g(f"v_and_b32 v{vT+1}, 1, v{vLane}")
    g(f"v_lshl_or_b32 v{vT}, v{vT}, 1, v{vT+1}")
    g(f"v_lshl_add_u32 v{vWo}, v{vT}, 4, v{vWo}")
    g(f"v_lshlrev_b32 v{vAo}, 4, v{vLane}")
    g(f"s_lshl_b32 s6, s{sRB}, 3")
    g(f"s_add_u32 s6, s6, s{sW}")
    g(f"s_lshl_b32 s46, s6, 14")
    g(f"s_add_u32 s46, s46, {WS_H}")
    g(f"s_lshl_b32 s47, s6, 11")
    g(f"s_add_u32 s47, s47, {WS_STAT}")
    g(f"v_lshlrev_b32 v{vT}, 7, v{vL15}")
    g(f"v_lshl_add_u32 v{vT}, v{vG}, 5, v{vT}")
    g.vmem(f"buffer_load_dwordx4 {vr(ST,4)}, v{vT}, s[{sWS}:{sWS+3}], s47 offen", "st")
    g.vmem(f"buffer_load_dwordx4 {vr(ST+4,4)}, v{vT}, s[{sWS}:{sWS+3}], s47 offen offset:16", "st")
    g(f"s_lshl_b32 s44, s{sW}, 10")
    g(f"s_mul_i32 s45, s{sW}, {4*3584}")
    def issue_items(c):
        it = []
        for t in range(4):
            tt = 4*c + t
            it.append([f"s_add_u32 m0, s44, {tt*8192}",
                       f"s_add_u32 s7, s45, {tt*32*3584}",
                       ("vm", f"buffer_load_dwordx4 v{vWo}, s[{sW1}:{sW1+3}], s7 offen lds", ("c", c))])
            it.append([f"s_add_u32 s48, s46, {(4*c+t)*1024}",
                       ("vm", f"buffer_load_dwordx4 {vr(af(c,t),4)}, v{vAo}, s[{sWS}:{sWS+3}], s48 offen", ("c", c))])
        return it
    for c in range(2):
        for it in issue_items(c): g.emit_item(it)
    g(f"""
    v_bfe_u32 v{vT}, v{vLane}, 2, 2
    v_lshl_add_u32 v{vT+1}, v{vG}, 2, v{vT}
    v_lshlrev_b32 v{vT+2}, 8, v{vT+1}
    v_and_b32 v{vT+3}, 3, v{vLane}
    v_lshl_add_u32 v{vT+2}, v{vT+3}, 3, v{vT+2}
    v_and_b32 v{vT+1}, 7, v{vT+1}
    """)
    for u in range(8):
        g(f"v_xor_b32 v{vT+3}, {u}, v{vT+1}")
        g(f"v_lshl_add_u32 v{vTB+u}, v{vT+3}, 5, v{vT+2}")
    g.wait_tag("st")
    b = ST
    g(f"v_add_f32 v{b}, v{b}, v{b+2}")
    g(f"v_add_f32 v{b+1}, v{b+1}, v{b+3}")
    g(f"v_add_f32 v{b+4}, v{b+4}, v{b+6}")
    g(f"v_add_f32 v{b+5}, v{b+5}, v{b+7}")
    g(f"v_add_f32 v{b}, v{b}, v{b+4}")
    g(f"v_add_f32 v{b+1}, v{b+1}, v{b+5}")
    reduce_g(g, b, vT)
    reduce_g(g, b+1, vT)
    ln_stats(g, b, b+1, vM, vM+1, vT)
    g(f"v_sub_f32 v{vM}, 0, v{vM}")
    stamp(g)
    def center(c, q):
        r = []
        for k in range(4):
            a = af(c,q)+k
            t = vT + 2*(k % 3)
            r.append([f"v_lshlrev_b32 v{t}, 16, v{a}",
                      f"v_and_b32 v{t+1}, 0xffff0000, v{a}",
                      f"v_pk_add_f32 v[{t}:{t+1}], v[{t}:{t+1}], v[{vM}:{vM+1}] op_sel_hi:[1,0]",
                      f"v_cvt_pk_bf16_f32 v{a}, v{t}, v{t+1}"])
        return r
    def reads(c, q, buf):
        ks = 4*c+q
        off = (ks & 7)*8192
        r = []
        for u in range(8):
            r.append(f"ds_read_b64_tr_b16 {vr(wf(buf,u),2)}, v{vTB+u} offset:{off}")
            r.append(f"ds_read_b64_tr_b16 {vr(wf(buf,u)+2,2)}, v{vTB+u} offset:{off+4096}")
        return r
    def mfmas(c, q, buf):
        m = []
        for u in range(8):
            c0 = "0" if (c == 0 and q == 0) else vr(acc(u),4)
            m.append(f"v_mfma_f32_16x16x32_bf16 {vr(acc(u),4)}, {vr(wf(buf,u),4)}, {vr(af(c,q),4)}, {c0}")
        return m
    g.wait_tag(("c", 0))
    g("s_barrier")
    stamp(g)
    for r in reads(0, 0, 0): g(r)
    for it in center(0, 0): g.emit_item(it)
    pend = issue_items(2)
    kstep = 0
    for c in range(NCH):
        for q in range(4):
            buf = kstep & 1
            last = (c == NCH-1 and q == 3)
            if q == 3 and c+1 < NCH:
                stamp(g)
                g.wait_tag(("c", c+1))
                g("s_barrier")
                stamp(g)
                if c+3 < NCH:
                    pend = pend + issue_items(c+3)
            g("s_waitcnt lgkmcnt(0)")
            side = []
            if not last:
                nc, nq = (c, q+1) if q < 3 else (c+1, 0)
                rd = reads(nc, nq, buf^1)
                if nc*4+nq == 8:
                    rd = [f"v_add_u32 v{vTB+u}, 0x10000, v{vTB+u}" for u in range(8)] + rd
                ce = center(nc, nq)
                i = j = 0
                while i < len(rd) or j < len(ce):
                    for _ in range(4):
                        if i < len(rd): side.append(rd[i]); i += 1
                    if j < len(ce): side.append(ce[j]); j += 1
            take = pend[:3]; pend = pend[3:]
            side2 = []
            for i, s in enumerate(side):
                side2.append(s)
                if i % 6 == 5 and take: side2.append(take.pop(0))
            side2 += take
            g("s_nop 1")
            g.interleave(mfmas(c, q, buf), side2)
            kstep += 1
    stamp(g)
    g("s_nop 7")
    g("s_nop 1")
    HC = WF
    g(f"v_mul_f32 v{vT}, 0xbfb8aa3b, v{vM+1}")
    Y = AF
    rs, rl = vM+1, vT
    for pl in range(4):
        for nl in range(2):
            u = pl*2+nl
            a = acc(u)
            for r in range(4):
                g(f"v_mul_f32 v{Y+r}, v{rl}, v{a+r}")
                g(f"v_exp_f32 v{Y+r}, v{Y+r}")
            for r in range(4):
                g(f"v_mul_f32 v{a+r}, v{rs}, v{a+r}")
            for r in range(4):
                g(f"v_add_f32 v{Y+r}, 1.0, v{Y+r}")
                g(f"v_rcp_f32 v{Y+r}, v{Y+r}")
            g("s_nop 0")
            for r in range(4):
                g(f"v_mul_f32 v{a+r}, v{a+r}, v{Y+r}")
            h = HC + pl*4 + nl*2
            g(f"v_cvt_pk_bf16_f32 v{h}, v{a}, v{a+1}")
            g(f"v_cvt_pk_bf16_f32 v{h+1}, v{a+2}, v{a+3}")
    g(f"v_lshlrev_b32 v{vT+2}, 4, v{vLane}")
    g(f"s_lshl_b32 s6, s{sRB}, 3")
    g(f"s_add_u32 s6, s6, s{sW}")
    g(f"s_mul_i32 s6, s6, 56")
    g(f"s_lshl_b32 s7, s{sCB}, 2")
    g(f"s_add_u32 s6, s6, s7")
    g(f"s_lshl_b32 s6, s6, 10")
    g(f"s_add_u32 s6, s6, {WS_H1}")
    for pl in range(4):
        g(f"buffer_store_dwordx4 {vr(HC+pl*4,4)}, v{vT+2}, s[{sWS}:{sWS+3}], s6 offen offset:{pl*1024}")
    stamp(g); stamp_real(g, 1)
    g(f"s_cmp_ge_u32 s{sW}, 4")
    g(f"s_cbranch_scc1 {name}_end")
    stamp_flush(g, 2, sW, sWS)
    g.label(f"{name}_end")
    g("s_endpgm")
```

```python
from core import *
LDS = 65536
VGPRS = 160
ACCUM = 160

def gen_k4(g, name="k4_kernel"):
    g.reset_vm()
    vLane, vG, vL15 = 1, 2, 3
    vT = 4
    vWo, vAo = 12, 13
    vTB = 16
    HR = 20
    ACC = 28
    WF = 44
    AR = 76
    sRB, sCB, sW = 3, 4, 5
    sW2, sWS, sOUT = 8, 12, 16
    NCH, NS, PD = 14, 4, 3
    kernel_header(g, name)
    stamp_reset(); stamp(g); stamp_real(g, 0)
    g(f"""
    s_cmp_ge_u32 s2, 256
    s_cbranch_scc1 {name}_end
    s_load_dwordx2 s[38:39], s[0:1], 40
    s_load_dwordx2 s[40:41], s[0:1], 48
    s_load_dwordx2 s[42:43], s[0:1], 64
    s_and_b32 s6, s2, 7
    s_lshl_b32 s{sRB}, s6, 2
    s_bfe_u32 s7, s2, 0x20003
    s_add_u32 s{sRB}, s{sRB}, s7
    s_lshr_b32 s{sCB}, s2, 5
    v_and_b32 v{vLane}, 63, v0
    v_lshrrev_b32 v{vT}, 6, v0
    v_lshrrev_b32 v{vG}, 4, v{vLane}
    v_readfirstlane_b32 s{sW}, v{vT}
    v_and_b32 v{vL15}, 15, v{vLane}
    s_waitcnt lgkmcnt(0)
    """)
    g(f"s_lshl_b32 s6, s{sCB}, 7")
    g(f"s_add_u32 s{sW2}, s38, s6")
    g(f"s_addc_u32 s{sW2+1}, s39, 0")
    g(f"s_sub_u32 s{sW2+2}, 1835008, s6")
    g(f"s_mov_b32 s{sW2+3}, 0x00020000")
    srd(g, sWS, "s42", "s43", WS_BYTES)
    srd(g, sOUT, "s40", "s41", 2097152)
    g(f"""
    v_lshrrev_b32 v{vT}, 3, v{vLane}
    v_lshlrev_b32 v{vWo}, 10, v{vT}
    v_bfe_u32 v{vT}, v{vLane}, 1, 2
    v_bfe_u32 v{vT+1}, v{vLane}, 4, 2
    v_xor_b32 v{vT}, v{vT}, v{vT+1}
    v_and_b32 v{vT+1}, 1, v{vLane}
    v_lshl_or_b32 v{vT}, v{vT}, 1, v{vT+1}
    v_lshl_add_u32 v{vWo}, v{vT}, 4, v{vWo}
    v_lshlrev_b32 v{vAo}, 4, v{vLane}
    """)
    g(f"s_lshl_b32 s6, s{sRB}, 2")
    g(f"s_add_u32 s6, s6, s{sW}")
    g(f"s_mul_i32 s46, s6, {56*1024}")
    g(f"s_add_u32 s46, s46, {WS_H1}")
    g(f"s_lshl_b32 s47, s6, 14")
    g(f"s_lshl_b32 s7, s{sCB}, 11")
    g(f"s_add_u32 s47, s47, s7")
    g(f"s_add_u32 s47, s47, {WS_H}")
    g(f"s_lshl_b32 s44, s{sW}, 10")
    g(f"s_lshl_b32 s45, s{sW}, 13")
    def issue_items(c):
        slot = c % NS
        it = []
        for t in range(4):
            it.append([f"s_add_u32 m0, s44, {slot*16384 + t*4096}",
                       f"s_add_u32 s7, s45, {c*131072 + t*32768}",
                       ("vm", f"buffer_load_dwordx4 v{vWo}, s[{sW2}:{sW2+3}], s7 offen lds", ("c", c))])
            it.append([f"s_add_u32 s48, s46, {(c*4+t)*1024}",
                       ("vm", f"buffer_load_dwordx4 {vr(AR+(slot*4+t)*4,4)}, v{vAo}, s[{sWS}:{sWS+3}], s48 offen", ("c", c))])
        return it
    for pl in range(2):
        g.vmem(f"buffer_load_dwordx4 {vr(HR+pl*4,4)}, v{vAo}, s[{sWS}:{sWS+3}], s47 offen offset:{pl*1024}", "hr")
    for c in range(PD):
        for it in issue_items(c): g.emit_item(it)
    g(f"""
    v_bfe_u32 v{vT}, v{vLane}, 2, 2
    v_lshl_add_u32 v{vT+1}, v{vG}, 2, v{vT}
    v_lshlrev_b32 v{vT+1}, 7, v{vT+1}
    v_and_b32 v{vT+2}, 3, v{vLane}
    v_lshl_add_u32 v{vT+1}, v{vT+2}, 3, v{vT+1}
    v_lshrrev_b32 v{vT}, 1, v{vT}
    v_lshl_add_u32 v{vT}, v{vG}, 1, v{vT}
    v_and_b32 v{vT}, 3, v{vT}
    """)
    for u in range(4):
        g(f"v_xor_b32 v{vT+2}, {u}, v{vT}")
        g(f"v_lshl_add_u32 v{vTB+u}, v{vT+2}, 5, v{vT+1}")
    stamp(g)
    def reads(c, q, buf):
        slot = c % NS
        off = slot*16384 + q*4096
        r = []
        for u in range(4):
            r.append(f"ds_read_b64_tr_b16 {vr(WF+(buf*4+u)*4,2)}, v{vTB+u} offset:{off}")
            r.append(f"ds_read_b64_tr_b16 {vr(WF+(buf*4+u)*4+2,2)}, v{vTB+u} offset:{off+2048}")
        return r
    def mfmas(c, q, buf):
        slot = c % NS
        m = []
        for u in range(4):
            c0 = "0" if (c == 0 and q == 0) else vr(ACC+u*4,4)
            m.append(f"v_mfma_f32_16x16x32_bf16 {vr(ACC+u*4,4)}, {vr(WF+(buf*4+u)*4,4)}, {vr(AR+(slot*4+q)*4,4)}, {c0}")
        return m
    g.wait_tag(("c", 0))
    g("s_barrier")
    for r in reads(0, 0, 0): g(r)
    pend = []
    kstep = 0
    for c in range(NCH):
        for q in range(4):
            buf = kstep & 1
            last = (c == NCH-1 and q == 3)
            if q == 3 and c+1 < NCH:
                g.wait_tag(("c", c+1))
                g("s_barrier")
                if c+PD < NCH:
                    pend = issue_items(c+PD)
            g("s_waitcnt lgkmcnt(0)")
            side = []
            if not last:
                nc, nq = (c, q+1) if q < 3 else (c+1, 0)
                side += reads(nc, nq, buf^1)
            take = pend[:3]; pend = pend[3:]
            side2 = []
            for i, s in enumerate(side):
                side2.append(s)
                if i % 3 == 2 and take: side2.append(take.pop(0))
            side2 += take
            g.interleave(mfmas(c, q, buf), side2)
            kstep += 1
    stamp(g)
    g("s_nop 7")
    g("s_nop 1")
    g(f"v_lshlrev_b32 v{vT}, 10, v{vL15}")
    g(f"v_lshl_add_u32 v{vT}, v{vG}, 3, v{vT}")
    g(f"s_lshl_b32 s6, s{sRB}, 2")
    g(f"s_add_u32 s6, s6, s{sW}")
    g(f"s_lshl_b32 s6, s6, 14")
    g(f"s_lshl_b32 s7, s{sCB}, 7")
    g(f"s_add_u32 s6, s6, s7")
    for pl in range(2):
        for nl in range(2):
            u = pl*2+nl
            a = ACC + u*4
            for pr in range(2):
                r0, r1 = a+2*pr, a+2*pr+1
                hx = HR + pl*4 + nl*2 + pr
                g(f"v_cvt_pk_bf16_f32 v{vT+2}, v{r0}, v{r1}")
                g(f"v_lshlrev_b32 v{r0}, 16, v{vT+2}")
                g(f"v_and_b32 v{r1}, 0xffff0000, v{vT+2}")
                g(f"v_lshlrev_b32 v{vT+2}, 16, v{hx}")
                g(f"v_and_b32 v{vT+3}, 0xffff0000, v{hx}")
                g(f"v_add_f32 v{r0}, v{r0}, v{vT+2}")
                g(f"v_add_f32 v{r1}, v{r1}, v{vT+3}")
                g(f"v_cvt_pk_bf16_f32 v{a+pr}, v{r0}, v{r1}")
            g(f"buffer_store_dwordx2 {vr(a,2)}, v{vT}, s[{sOUT}:{sOUT+3}], s6 offen offset:{pl*64+nl*32}")
    stamp(g); stamp_real(g, 1)
    stamp_flush(g, 3, sW, sWS)
    g.label(f"{name}_end")
    g("s_endpgm")
```
